```python
import torch

def _softmax(x, axis=-1):
    return torch.softmax(x, dim=axis)
def _gelu(x):
    return torch.nn.functional.gelu(x, approximate="tanh")
def _silu(x):
    return torch.nn.functional.silu(x)
def _sigmoid(x):
    return torch.sigmoid(x)
def _layernorm(x, axis=-1, eps=1e-5):
    m = x.mean(dim=axis, keepdim=True)
    v = x.var(dim=axis, keepdim=True, unbiased=False)
    return (x - m) / torch.sqrt(v + eps)
def _scatter_add(tgt, idx, src, axis=0):
    return tgt.clone().index_add_(axis, idx, src)
def _segment_sum(src, seg, n):
    out = torch.zeros((n,) + src.shape[1:], dtype=src.dtype)
    return out.index_add_(0, seg, src)
def _pad(x, pw):
    flat = tuple(v for pair in reversed(pw) for v in pair)
    return torch.nn.functional.pad(x, flat)

kernel_name = 'standalone__mixer_token_mlp__prompt'

def setup_inputs():

    _w = (lambda a: (lambda t: t.to(torch.bfloat16) if t.is_floating_point() else t)(torch.as_tensor(a)))
    B, S, D, F = 1, 2048, 512, 1376
    return {
        "x": _w((lambda *s: torch.randn(*s, dtype=torch.bfloat16) * 0.05)(B, S, D)),
        "w1": _w((lambda *s: torch.randn(*s, dtype=torch.bfloat16) * 0.2)(S, F) * (S ** -0.5)),
        "b1": _w((lambda *s: torch.randn(*s, dtype=torch.bfloat16) * 1.6)(F) * 0.02),
        "w2": _w((lambda *s: torch.randn(*s, dtype=torch.bfloat16) * 0.05)(F, S) * (F ** -0.5)),
        "b2": _w((lambda *s: torch.randn(*s, dtype=torch.bfloat16) * 0.1)(S) * 0.02),
    }

def reference(x, w1, b1, w2, b2):
    B, S, D = x.shape
    h = _layernorm(x, axis=-1)
    u = torch.einsum("bsd,sf->bdf", h, w1) + b1
    u = _gelu(u)
    y = torch.einsum("bdf,fs->bds", u, w2) + b2
    return (lambda x, *d: x.permute(*d))(y, 0, 2, 1)
```

```python
class Asm:
    def __init__(self):
        self.lines = []
    def __call__(self, s):
        for l in s.strip('\n').split('\n'):
            self.lines.append('    ' + l.strip() if not l.strip().endswith(':') else l.strip())
    def raw(self, s):
        self.lines.append(s)
    def label(self, n):
        self.lines.append(n + ':')
    def text(self):
        return '\n'.join(self.lines) + '\n'

def vr(a, n=1):
    return f"v{a}" if n == 1 else f"v[{a}:{a+n-1}]"
def ar(a, n=1):
    return f"a{a}" if n == 1 else f"a[{a}:{a+n-1}]"
def sr(a, n=1):
    return f"s{a}" if n == 1 else f"s[{a}:{a+n-1}]"

HEADER = """; Kernarg layout for this problem (64 bytes, ptrs only, base s[0:1]):
"""

def kernel_begin(a, name):
    a.raw(f".globl {name}")
    a.raw(".p2align 8")
    a.raw(f".type {name},@function")
    a.label(name)

def kernel_desc(name, vgpr, sgpr, accum=None):
    if accum is None:
        accum = (vgpr + 3) // 4 * 4
    return f""".p2align 6
.amdhsa_kernel {name}
  .amdhsa_next_free_vgpr {vgpr}
  .amdhsa_next_free_sgpr {sgpr}
  .amdhsa_accum_offset {accum}
  .amdhsa_group_segment_fixed_size 0
  .amdhsa_kernarg_size 64
  .amdhsa_user_sgpr_count 2
  .amdhsa_user_sgpr_kernarg_segment_ptr 1
  .amdhsa_system_sgpr_workgroup_id_x 1
  .amdhsa_float_denorm_mode_32 3
  .amdhsa_float_denorm_mode_16_64 3
.end_amdhsa_kernel
"""

import struct
def f2u(x):
    return struct.unpack('<I', struct.pack('<f', x))[0]
```

```python
import sys, math
from asmlib import *

HF_BYTES = 2048*512*2
UF_OFF = HF_BYTES
UF_BYTES = 172*8192

def gen_ln(a):
    kernel_begin(a, "ln_kernel")
    a(f"""
    s_cmp_ge_u32 s2, 256
    s_cbranch_scc1 L_ln_done
    s_load_dwordx2 s[4:5], s[0:1], 0
    s_load_dwordx2 s[6:7], s[0:1], 56
    v_lshlrev_b32 v1, 4, v0
    v_lshlrev_b32 v2, 7, v0
    s_lshl_b32 s16, s2, 13
    s_add_u32 s17, s16, 4096
    s_mov_b32 s10, {HF_BYTES}
    s_mov_b32 s11, 0x20000
    s_mov_b32 s14, {HF_BYTES}
    s_mov_b32 s15, 0x20000
    s_waitcnt lgkmcnt(0)
    s_mov_b32 s8, s4
    s_mov_b32 s9, s5
    s_mov_b32 s12, s6
    s_mov_b32 s13, s7
    """)
    for j in range(8):
        a(f"buffer_load_dwordx4 {vr(4+4*j,4)}, v1, s[8:11], {'s16' if j<4 else 's17'} offen offset:{(j&3)*1024}")
    E = 40
    def e(j,i): return E+8*j+i
    S = 104
    a("s_mov_b32 s18, 0xffff0000")
    for j in range(8):
        a(f"s_waitcnt vmcnt({7-j})")
        for i in range(4):
            a(f"v_lshlrev_b32 {vr(e(j,2*i))}, 16, {vr(4+4*j+i)}")
            a(f"v_and_b32 {vr(e(j,2*i+1))}, s18, {vr(4+4*j+i)}")
        a(f"v_pk_add_f32 {vr(S+2*j,2)}, {vr(e(j,0),2)}, {vr(e(j,2),2)}")
        a(f"v_pk_add_f32 v[2:3], {vr(e(j,4),2)}, {vr(e(j,6),2)}".replace("v[2:3]", "v[120:121]"))
        a(f"v_pk_add_f32 {vr(S+2*j,2)}, {vr(S+2*j,2)}, v[120:121]")
        a(f"v_add_f32 {vr(S+2*j)}, {vr(S+2*j)}, {vr(S+2*j+1)}")
    def reduce8():
        a("s_nop 1")
        for p in range(4):
            a(f"v_permlane32_swap_b32 {vr(S+4*p)}, {vr(S+4*p+2)}")
        a("s_nop 1")
        for p in range(4):
            a(f"v_add_f32 {vr(S+4*p)}, {vr(S+4*p)}, {vr(S+4*p+2)}")
        a("s_nop 1")
        a(f"v_permlane16_swap_b32 {vr(S)}, {vr(S+4)}")
        a(f"v_permlane16_swap_b32 {vr(S+8)}, {vr(S+12)}")
        a("s_nop 1")
        a(f"v_add_f32 {vr(S)}, {vr(S)}, {vr(S+4)}")
        a(f"v_add_f32 {vr(S+8)}, {vr(S+8)}, {vr(S+12)}")
        for sh in (8,4,2,1):
            a("s_nop 1")
            a(f"v_add_f32_dpp {vr(S)}, {vr(S)}, {vr(S)} row_ror:{sh} row_mask:0xf bank_mask:0xf")
            a(f"v_add_f32_dpp {vr(S+8)}, {vr(S+8)}, {vr(S+8)} row_ror:{sh} row_mask:0xf bank_mask:0xf")
    def readl(sbase):
        a("s_nop 1")
        order = {0:(S,0), 2:(S,16), 1:(S,32), 3:(S,48), 4:(S+8,0), 6:(S+8,16), 5:(S+8,32), 7:(S+8,48)}
        for j in range(8):
            r, ln = order[j]
            a(f"v_readlane_b32 s{sbase+2*j}, {vr(r)}, {ln}")
        a("s_nop 1")
    reduce8()
    a(f"s_mov_b32 s19, {hex(f2u(-1.0/512))}")
    a(f"v_mul_f32 {vr(S)}, s19, {vr(S)}")
    a(f"v_mul_f32 {vr(S+8)}, s19, {vr(S+8)}")
    readl(20)
    for j in range(8):
        for i in range(4):
            a(f"v_pk_add_f32 {vr(e(j,2*i),2)}, {vr(e(j,2*i),2)}, s[{20+2*j}:{21+2*j}] op_sel_hi:[1,0]")
        a(f"v_pk_mul_f32 {vr(S+2*j,2)}, {vr(e(j,0),2)}, {vr(e(j,0),2)}")
        for i in range(1,4):
            a(f"v_pk_fma_f32 {vr(S+2*j,2)}, {vr(e(j,2*i),2)}, {vr(e(j,2*i),2)}, {vr(S+2*j,2)}")
        a(f"v_add_f32 {vr(S+2*j)}, {vr(S+2*j)}, {vr(S+2*j+1)}")
    reduce8()
    a(f"s_mov_b32 s19, {hex(f2u(1.0/512))}")
    a(f"v_mov_b32 v122, {hex(f2u(1e-5))}")
    a(f"v_fma_f32 {vr(S)}, {vr(S)}, s19, v122")
    a(f"v_fma_f32 {vr(S+8)}, {vr(S+8)}, s19, v122")
    a(f"v_rsq_f32 {vr(S)}, {vr(S)}")
    a(f"v_rsq_f32 {vr(S+8)}, {vr(S+8)}")
    readl(36)
    for j in range(8):
        for i in range(4):
            a(f"v_pk_mul_f32 {vr(e(j,2*i),2)}, {vr(e(j,2*i),2)}, s[{36+2*j}:{37+2*j}] op_sel_hi:[1,0]")
    for i in range(8):
        for jj in range(4):
            a(f"v_cvt_pk_bf16_f32 {vr(4+4*i+jj)}, {vr(e(2*jj,i))}, {vr(e(2*jj+1,i))}")
        a(f"buffer_store_dwordx4 {vr(4+4*i,4)}, v2, s[12:15], s16 offen offset:{16*i}")
    a.label("L_ln_done")
    a("s_endpgm")

def gen_gemm(a, which):
    g1 = which == 1
    name = "gemm1_kernel" if g1 else "gemm2_kernel"
    NK = 64 if g1 else 43
    ROWB = 2752 if g1 else 4096
    NWG = 176 if g1 else 256
    RING = 32
    groups = [list(range(k, min(k+4, NK))) for k in range(0, NK, 4)]
    NG = len(groups)
    kernel_begin(a, name)
    a(f"""
    s_cmp_ge_u32 s2, {NWG}
    s_cbranch_scc1 L_{name}_done
    s_load_dwordx2 s[4:5], s[0:1], {8 if g1 else 24}
    s_load_dwordx2 s[6:7], s[0:1], 56
    s_load_dwordx2 s[20:21], s[0:1], {16 if g1 else 32}
    s_load_dwordx2 s[24:25], s[0:1], 40
    """)
    a("s_and_b32 s28, s2, 7")
    a("s_lshr_b32 s29, s2, 3")
    if g1:
        a("""
        s_lshr_b32 s30, s28, 1
        s_mul_i32 s30, s30, 22
        s_add_u32 s30, s30, s29      ; t
        s_and_b32 s31, s30, 3
        s_lshr_b32 s30, s30, 2       ; ft
        s_and_b32 s28, s28, 1
        s_lshl_b32 s28, s28, 2
        s_add_u32 s31, s31, s28      ; dt
        """)
    else:
        a("""
        s_and_b32 s31, s29, 7        ; dt
        s_lshr_b32 s30, s29, 3       ; 0..3
        s_lshl_b32 s28, s28, 2
        s_add_u32 s30, s30, s28      ; st
        """)
    a("""
    s_lshl_b32 s30, s30, 6
    s_lshl_b32 s31, s31, 6
    v_and_b32 v1, 63, v0          ; lane
    v_lshrrev_b32 v2, 6, v0       ; wave
    s_nop 0
    v_readfirstlane_b32 s32, v2
    """)
    a(f"""
    v_lshrrev_b32 v4, 3, v1       ; l>>3
    v_lshl_add_u32 v4, v2, 3, v4  ; row = 8w + l>>3
    s_mov_b32 s33, {ROWB}
    v_mul_lo_u32 v3, v4, s33
    v_bfe_u32 v5, v1, 4, 1        ; (l>>4)&1
    v_and_b32 v6, 1, v2
    v_lshl_or_b32 v5, v6, 1, v5   ; sw
    v_bfe_u32 v6, v1, 1, 2        ; p>>1
    v_xor_b32 v6, v6, v5
    v_and_b32 v7, 1, v1
    v_lshl_or_b32 v6, v6, 1, v7   ; srcchunk
    v_lshl_add_u32 v3, v6, 4, v3
    s_lshl_b32 s33, s30, 1
    v_add_u32 v3, s33, v3         ; + col0*2
    """)
    a("""
    v_lshrrev_b32 v5, 4, v1       ; g
    v_and_b32 v6, 15, v1          ; n
    v_lshl_add_u32 v4, v5, 9, v6
    v_lshl_add_u32 v4, v2, 4, v4
    v_add_u32 v4, s31, v4
    v_lshlrev_b32 v4, 4, v4
    """)
    a("""
    v_bfe_u32 v7, v1, 2, 2        ; r
    v_lshl_add_u32 v16, v5, 3, v7 ; row = 8g + r
    v_lshlrev_b32 v16, 7, v16     ; row*128
    v_and_b32 v17, 3, v1          ; c
    v_lshl_add_u32 v16, v17, 3, v16
    v_bfe_u32 v17, v1, 3, 1       ; (r>>1)&1
    v_and_b32 v18, 1, v5
    v_lshl_or_b32 v17, v18, 1, v17 ; sw
    """)
    for fb in range(4):
        a(f"v_xor_b32 v18, {fb}, v17")
        a(f"v_lshl_add_u32 v{8+fb}, v18, 5, v16")
        a(f"v_add_u32 v{12+fb}, 0x10000, v{8+fb}")
    ACC = 20
    BIAS = 36
    FR = 44
    HR = 76
    for i in range(16):
        a(f"v_mov_b32 v{ACC+i}, 0")
    a(f"""
    s_mov_b32 s10, {2048*2752}
    s_mov_b32 s11, 0x20000
    s_mov_b32 s14, {HF_BYTES if g1 else UF_BYTES}
    s_mov_b32 s15, 0x20000
    s_mov_b32 s22, {2752 if g1 else 4096}
    s_mov_b32 s23, 0x20000
    s_mov_b32 s18, {UF_BYTES if g1 else HF_BYTES}
    s_mov_b32 s19, 0x20000
    s_lshl_b32 s34, s32, 10
    s_mov_b32 s35, 0              ; w soffset
    s_mov_b32 s36, 0
    s_waitcnt lgkmcnt(0)
    s_mov_b32 s8, s4
    s_mov_b32 s9, s5
    """)
    if g1:
        a(f"""
        s_mov_b32 s12, s6
        s_mov_b32 s13, s7
        s_add_u32 s16, s6, {UF_OFF}
        s_addc_u32 s17, s7, 0
        """)
        a("""
        v_lshlrev_b32 v16, 3, v5
        s_lshl_b32 s33, s30, 1
        v_add_u32 v16, s33, v16
        """)
        for fb in range(4):
            a(f"buffer_load_dwordx2 {vr(BIAS+2*fb,2)}, v16, s[20:23], 0 offen offset:{32*fb}")
    else:
        a(f"""
        s_add_u32 s12, s6, {UF_OFF}
        s_addc_u32 s13, s7, 0
        s_mov_b32 s16, s24
        s_mov_b32 s17, s25
        """)
        a("""
        v_add_u32 v16, s30, v6
        v_lshlrev_b32 v16, 1, v16
        """)
        for sb in range(4):
            a(f"buffer_load_ushort {vr(BIAS+sb)}, v16, s[20:23], 0 offen offset:{32*sb}")
    def issue_group(g):
        for ks in groups[g]:
            slot = ks % RING
            a(f"s_add_u32 m0, s34, {slot*4096}")
            a(f"buffer_load_dwordx4 {vr(HR+4*slot,4)}, v4, s[12:15], s36 offen")
            a(f"buffer_load_dwordx4 v3, s[8:11], s35 offen lds")
            a(f"s_add_u32 s35, s35, {32*ROWB}")
            a(f"s_add_u32 s36, s36, 32768")
    def reads(ks, buf):
        slot = ks % RING
        base = 8 if slot < 16 else 12
        off = (slot % 16) * 4096
        for fb in range(4):
            a(f"ds_read_b64_tr_b16 {vr(FR+16*buf+4*fb,2)}, v{base+fb} offset:{off}")
            a(f"ds_read_b64_tr_b16 {vr(FR+16*buf+4*fb+2,2)}, v{base+fb} offset:{off+512}")
    def mfmas(ks, buf):
        slot = ks % RING
        for fb in range(4):
            w = vr(FR+16*buf+4*fb,4); h = vr(HR+4*slot,4); c = vr(ACC+4*fb,4)
            if g1:
                a(f"v_mfma_f32_16x16x32_bf16 {c}, {w}, {h}, {c}")
            else:
                a(f"v_mfma_f32_16x16x32_bf16 {c}, {h}, {w}, {c}")
    for g in range(7):
        issue_group(g)
    issued = 7
    def outstanding_after(g):
        return sum(2*len(groups[x]) for x in range(g+1, issued))
    a(f"s_waitcnt vmcnt({outstanding_after(0)})")
    a("s_barrier")
    buf = 0
    reads(0, 0)
    issue_group(7); issued = 8
    for g in range(NG):
        kss = groups[g]
        for i, ks in enumerate(kss):
            last = i == len(kss)-1
            if not last:
                reads(ks+1, buf^1)
                a("s_waitcnt lgkmcnt(8)")
                mfmas(ks, buf)
            else:
                if g+1 < NG:
                    a(f"s_waitcnt vmcnt({outstanding_after(g+1)}) lgkmcnt(0)")
                    a("s_barrier")
                    reads(ks+1, buf^1)
                    mfmas(ks, buf)
                    if issued < NG:
                        issue_group(issued); issued += 1
                else:
                    a("s_waitcnt lgkmcnt(0)")
                    mfmas(ks, buf)
            buf ^= 1
    a("s_nop 15")
    T = 44
    if g1:
        c0 = -2.0*math.sqrt(2.0/math.pi)*math.log2(math.e)
        c1 = c0*0.044715
        a(f"s_mov_b32 s40, {hex(f2u(c1))}")
        a(f"v_mov_b32 v19, {hex(f2u(c0))}")
        a("s_mov_b32 s41, 0xffff0000")
        a("""
        v_lshrrev_b32 v16, 1, v5
        s_lshr_b32 s33, s30, 3
        v_add_u32 v16, s33, v16
        v_lshl_add_u32 v16, v16, 9, v6
        v_lshl_add_u32 v16, v2, 4, v16
        v_add_u32 v16, s31, v16
        v_lshlrev_b32 v16, 4, v16
        v_and_b32 v17, 1, v5
        v_lshl_add_u32 v16, v17, 3, v16
        """)
        for fb in range(4):
            for r in range(4):
                b = BIAS+2*fb+(r>>1)
                t = T+4*fb+r
                if r&1: a(f"v_and_b32 v{t}, s41, v{b}")
                else: a(f"v_lshlrev_b32 v{t}, 16, v{b}")
                a(f"v_add_f32 v{ACC+4*fb+r}, v{ACC+4*fb+r}, v{t}")
            for r in range(4):
                u = ACC+4*fb+r; t = T+4*fb+r
                a(f"v_mul_f32 v{t}, v{u}, v{u}")
            for r in range(4):
                u = ACC+4*fb+r; t = T+4*fb+r
                a(f"v_fma_f32 v{t}, v{t}, s40, v19")
            for r in range(4):
                u = ACC+4*fb+r; t = T+4*fb+r
                a(f"v_mul_f32 v{t}, v{t}, v{u}")
            for r in range(4):
                t = T+4*fb+r
                a(f"v_exp_f32 v{t}, v{t}")
            a("s_nop 0")
            for r in range(4):
                t = T+4*fb+r
                a(f"v_add_f32 v{t}, 1.0, v{t}")
            for r in range(4):
                t = T+4*fb+r
                a(f"v_rcp_f32 v{t}, v{t}")
            a("s_nop 0")
            for r in range(4):
                u = ACC+4*fb+r; t = T+4*fb+r
                a(f"v_mul_f32 v{t}, v{t}, v{u}")
            a(f"v_cvt_pk_bf16_f32 v{T+4*fb}, v{T+4*fb}, v{T+4*fb+1}")
            a(f"v_cvt_pk_bf16_f32 v{T+4*fb+1}, v{T+4*fb+2}, v{T+4*fb+3}")
            a(f"s_mov_b32 s33, {fb*2*8192}")
            a(f"buffer_store_dwordx2 {vr(T+4*fb,2)}, v16, s[16:19], s33 offen")
    else:
        a("""
        v_add_u32 v16, s30, v6
        v_lshlrev_b32 v16, 9, v16
        v_lshl_add_u32 v16, v2, 4, v16
        v_lshl_add_u32 v16, v5, 2, v16
        v_add_u32 v16, s31, v16
        v_lshlrev_b32 v16, 1, v16
        """)
        for sb in range(4):
            a(f"v_lshlrev_b32 v{BIAS+sb}, 16, v{BIAS+sb}")
            for r in range(4):
                a(f"v_add_f32 v{ACC+4*sb+r}, v{ACC+4*sb+r}, v{BIAS+sb}")
            a(f"v_cvt_pk_bf16_f32 v{T+4*sb}, v{ACC+4*sb}, v{ACC+4*sb+1}")
            a(f"v_cvt_pk_bf16_f32 v{T+4*sb+1}, v{ACC+4*sb+2}, v{ACC+4*sb+3}")
            a(f"s_mov_b32 s33, {sb*16*1024}")
            a(f"buffer_store_dwordx2 {vr(T+4*sb,2)}, v16, s[16:19], s33 offen")
    a.label(f"L_{name}_done")
    a("s_endpgm")

def main(out, extra_empty=0):
    a = Asm()
    a.raw(HEADER.rstrip('\n'))
    a.raw("; @launch kernel=ln_kernel grid=(256,1,1) block=(64,1,1) lds=0")
    a.raw("; @launch kernel=gemm1_kernel grid=(176,1,1) block=(256,1,1) lds=131072")
    a.raw("; @launch kernel=gemm2_kernel grid=(256,1,1) block=(256,1,1) lds=131072")
    for i in range(extra_empty):
        a.raw("; @launch kernel=empty_kernel grid=(256,1,1) block=(256,1,1) lds=0")
    a.raw('.amdgcn_target "amdgcn-amd-amdhsa--gfx950"')
    a.raw(".text")
    gen_ln(a)
    gen_gemm(a, 1)
    gen_gemm(a, 2)
    if extra_empty:
        kernel_begin(a, "empty_kernel")
        a("s_endpgm")
    a.raw('.section .rodata,"a"')
    a.raw(kernel_desc("ln_kernel", 128, 64))
    a.raw(kernel_desc("gemm1_kernel", 208, 64))
    a.raw(kernel_desc("gemm2_kernel", 208, 64))
    if extra_empty:
        a.raw(kernel_desc("empty_kernel", 8, 16))
    open(out, 'w').write(a.text())

if __name__ == "__main__":
    main(sys.argv[1], int(sys.argv[2]) if len(sys.argv) > 2 else 0)
```

```python
STAMP = False
class Stamps:
    def __init__(self, a, kidx):
        self.a = a; self.k = kidx; self.n = 0
    def stamp(self, wait=True):
        if not STAMP: return
        i = self.n; self.n += 1
        if i == 0:
            self.a("s_memtime s[92:93]")
            self.a("s_getreg_b32 s94, hwreg(HW_REG_XCC_ID)")
        self.a(f"s_memrealtime s[{64+2*i}:{65+2*i}]")
        if wait: self.a("s_waitcnt lgkmcnt(0)")
    def flush(self, wsreg, wavesgpr=None, label="x"):
        if not STAMP: return
        a = self.a
        a("s_waitcnt vmcnt(0)")
        self.stamp()
        a("s_memtime s[90:91]")
        a("s_waitcnt lgkmcnt(0)")
        a("s_sub_u32 s90, s90, s92")
        if wavesgpr is not None:
            a(f"s_cmp_lg_u32 {wavesgpr}, 0")
            a(f"s_cbranch_scc1 L_st_{label}")
        a(f"s_add_u32 s96, s{wsreg}, {(128<<20) + self.k*65536}")
        a(f"s_addc_u32 s97, s{wsreg+1}, 0")
        a("s_mov_b32 s98, 65536")
        a("s_mov_b32 s99, 0x20000")
        a("s_lshl_b32 s95, s2, 7")
        a("v_mov_b32 v2, s95")
        for i in range(self.n):
            a(f"v_mov_b32 v0, s{64+2*i}")
            a(f"v_mov_b32 v1, s{65+2*i}")
            a(f"buffer_store_dwordx2 v[0:1], v2, s[96:99], 0 offen offset:{8*i}")
            a("s_waitcnt vmcnt(0)")
        a("v_mov_b32 v0, s90")
        a("v_mov_b32 v1, s94")
        a("buffer_store_dwordx2 v[0:1], v2, s[96:99], 0 offen offset:120")
        if wavesgpr is not None:
            a.label(f"L_st_{label}")
```

```python
import sys, math
from asmlib import *
import stamps
from stamps import Stamps

HF_BYTES = 2048*512*2
UF_OFF = HF_BYTES
UF_BYTES = 172*8192
W_BYTES = 2048*2752

class Cfg:
    x_pol = "nt"
    h_st = ""
    w1pf = 1
    w1pf_pol = "nt"
    w1_pol = ""
    h_pol = ""
    u_st = ""
    helpers = 1
    hpf = 1
    w2pf = 1
    w2pf_pol = "nt"
    w2_pol = ""
    u_pol = ""
    out_st = ""
    GS = 4
    LA = 3
    rot2 = 0
    rot1 = 0
    nomem = 0
    dup = 0
    nocomp = 0
    spread = 0
    arr1 = 18
C = Cfg()

def gen_ln(a):
    kernel_begin(a, "ln_kernel")
    a(f"""
    s_cmp_ge_u32 s2, 256
    s_cbranch_scc1 L_ln_done
    """)
    st = Stamps(a, 0)
    st.stamp()
    a(f"""
    s_load_dwordx4 s[4:7], s[0:1], 0
    s_load_dwordx2 s[52:53], s[0:1], 56
    v_lshrrev_b32 v3, 6, v0
    v_and_b32 v0, 63, v0
    v_readfirstlane_b32 s54, v3
    v_lshlrev_b32 v1, 4, v0
    v_lshlrev_b32 v2, 7, v0
    s_lshl_b32 s16, s2, 13
    s_add_u32 s17, s16, 4096
    s_mov_b32 s10, {HF_BYTES}
    s_mov_b32 s11, 0x20000
    s_mov_b32 s14, {HF_BYTES}
    s_mov_b32 s15, 0x20000
    s_mov_b32 s58, {W_BYTES}
    s_mov_b32 s59, 0x20000
    s_waitcnt lgkmcnt(0)
    s_mov_b32 s8, s4
    s_mov_b32 s9, s5
    s_mov_b32 s12, s52
    s_mov_b32 s13, s53
    s_mov_b32 s56, s6
    s_mov_b32 s57, s7
    """)
    if C.w1pf:
        a("""
        s_cmp_lg_u32 s54, 0
        s_cbranch_scc1 L_ln_pf
        """)
    for j in range(8):
        a(f"buffer_load_dwordx4 {vr(4+4*j,4)}, v1, s[8:11], {'s16' if j<4 else 's17'} offen offset:{(j&3)*1024} {C.x_pol}")
    E = 40
    def e(j,i): return E+8*j+i
    S = 104
    a("s_mov_b32 s18, 0xffff0000")
    for j in range(8):
        a(f"s_waitcnt vmcnt({7-j})")
        for i in range(4):
            a(f"v_lshlrev_b32 {vr(e(j,2*i))}, 16, {vr(4+4*j+i)}")
            a(f"v_and_b32 {vr(e(j,2*i+1))}, s18, {vr(4+4*j+i)}")
        a(f"v_pk_add_f32 {vr(S+2*j,2)}, {vr(e(j,0),2)}, {vr(e(j,2),2)}")
        a(f"v_pk_add_f32 v[120:121], {vr(e(j,4),2)}, {vr(e(j,6),2)}")
        a(f"v_pk_add_f32 {vr(S+2*j,2)}, {vr(S+2*j,2)}, v[120:121]")
        a(f"v_add_f32 {vr(S+2*j)}, {vr(S+2*j)}, {vr(S+2*j+1)}")
    st.stamp()
    def reduce8():
        a("s_nop 1")
        for p in range(4):
            a(f"v_permlane32_swap_b32 {vr(S+4*p)}, {vr(S+4*p+2)}")
        a("s_nop 1")
        for p in range(4):
            a(f"v_add_f32 {vr(S+4*p)}, {vr(S+4*p)}, {vr(S+4*p+2)}")
        a("s_nop 1")
        a(f"v_permlane16_swap_b32 {vr(S)}, {vr(S+4)}")
        a(f"v_permlane16_swap_b32 {vr(S+8)}, {vr(S+12)}")
        a("s_nop 1")
        a(f"v_add_f32 {vr(S)}, {vr(S)}, {vr(S+4)}")
        a(f"v_add_f32 {vr(S+8)}, {vr(S+8)}, {vr(S+12)}")
        for sh in (8,4,2,1):
            a("s_nop 1")
            a(f"v_add_f32_dpp {vr(S)}, {vr(S)}, {vr(S)} row_ror:{sh} row_mask:0xf bank_mask:0xf")
            a(f"v_add_f32_dpp {vr(S+8)}, {vr(S+8)}, {vr(S+8)} row_ror:{sh} row_mask:0xf bank_mask:0xf")
    def readl(sbase):
        a("s_nop 1")
        order = {0:(S,0), 2:(S,16), 1:(S,32), 3:(S,48), 4:(S+8,0), 6:(S+8,16), 5:(S+8,32), 7:(S+8,48)}
        for j in range(8):
            r, ln = order[j]
            a(f"v_readlane_b32 s{sbase+2*j}, {vr(r)}, {ln}")
        a("s_nop 1")
    reduce8()
    a(f"s_mov_b32 s19, {hex(f2u(-1.0/512))}")
    a(f"v_mul_f32 {vr(S)}, s19, {vr(S)}")
    a(f"v_mul_f32 {vr(S+8)}, s19, {vr(S+8)}")
    readl(20)
    for j in range(8):
        for i in range(4):
            a(f"v_pk_add_f32 {vr(e(j,2*i),2)}, {vr(e(j,2*i),2)}, s[{20+2*j}:{21+2*j}] op_sel_hi:[1,0]")
        a(f"v_pk_mul_f32 {vr(S+2*j,2)}, {vr(e(j,0),2)}, {vr(e(j,0),2)}")
        for i in range(1,4):
            a(f"v_pk_fma_f32 {vr(S+2*j,2)}, {vr(e(j,2*i),2)}, {vr(e(j,2*i),2)}, {vr(S+2*j,2)}")
        a(f"v_add_f32 {vr(S+2*j)}, {vr(S+2*j)}, {vr(S+2*j+1)}")
    reduce8()
    a(f"s_mov_b32 s19, {hex(f2u(1.0/512))}")
    a(f"v_mov_b32 v122, {hex(f2u(1e-5))}")
    a(f"v_fma_f32 {vr(S)}, {vr(S)}, s19, v122")
    a(f"v_fma_f32 {vr(S+8)}, {vr(S+8)}, s19, v122")
    a(f"v_rsq_f32 {vr(S)}, {vr(S)}")
    a(f"v_rsq_f32 {vr(S+8)}, {vr(S+8)}")
    readl(36)
    for j in range(8):
        for i in range(4):
            a(f"v_pk_mul_f32 {vr(e(j,2*i),2)}, {vr(e(j,2*i),2)}, s[{36+2*j}:{37+2*j}] op_sel_hi:[1,0]")
    for i in range(8):
        for jj in range(4):
            a(f"v_cvt_pk_bf16_f32 {vr(4+4*i+jj)}, {vr(e(2*jj,i))}, {vr(e(2*jj+1,i))}")
        a(f"buffer_store_dwordx4 {vr(4+4*i,4)}, v2, s[12:15], s16 offen offset:{16*i} {C.h_st}")
    st.stamp()
    st.flush(52)
    a.label("L_ln_done")
    a("s_endpgm")
    if C.w1pf:
        a.label("L_ln_pf")
        a("""
        s_and_b32 s20, s2, 7
        s_lshr_b32 s21, s2, 3
        """)
        if C.arr1 == 18:
            a("""
            s_mul_i32 s22, s20, 22
            s_lshr_b32 s22, s22, 3
            """)
            NL = 5
        else:
            a("""
            s_lshr_b32 s22, s20, 1
            s_mul_i32 s22, s22, 22
            s_lshr_b32 s22, s22, 2
            """)
            NL = 7
        a(f"""
        s_lshl_b32 s22, s22, 7
        s_lshl_b32 s21, s21, 6
        v_add_u32 v1, s21, v0         ; row
        s_mov_b32 s23, 2752
        v_mul_lo_u32 v1, v1, s23
        v_add_u32 v1, s22, v1
        """)
        for i in range(NL):
            a(f"buffer_load_dword v{4+i}, v1, s[56:59], 0 offen offset:{128*i} {C.w1pf_pol}")
        a("s_endpgm")

def gen_gemm(a, which):
    g1 = which == 1
    name = "gemm1_kernel" if g1 else "gemm2_kernel"
    NK = 64 if g1 else 43
    ROWB = 2752 if g1 else 4096
    GS = C.GS; LA = C.LA
    RG = LA + 2
    RING = RG * GS
    wpol = C.w1_pol if g1 else C.w2_pol
    apol = C.h_pol if g1 else C.u_pol
    rot = C.rot1 if g1 else C.rot2
    groups = [list(range(k, min(k+GS, NK))) for k in range(0, NK, GS)]
    NG = len(groups)
    kernel_begin(a, name)
    a(f"""
    s_cmp_ge_u32 s2, {256 if (not g1 or C.helpers) else 176}
    s_cbranch_scc1 L_{name}_done
    """)
    st = Stamps(a, which)
    st.stamp()
    a(f"""
    s_load_dwordx2 s[4:5], s[0:1], {8 if g1 else 24}
    s_load_dwordx2 s[6:7], s[0:1], 56
    s_load_dwordx2 s[20:21], s[0:1], {16 if g1 else 32}
    s_load_dwordx2 s[24:25], s[0:1], {24 if g1 else 40}
    """)
    a("s_and_b32 s28, s2, 7")
    a("s_lshr_b32 s29, s2, 3")
    a("""
    v_and_b32 v1, 63, v0          ; lane
    v_lshrrev_b32 v2, 6, v0       ; wave
    s_nop 0
    v_readfirstlane_b32 s32, v2
    """)
    if g1 and C.helpers:
        a("""
        s_cmp_ge_u32 s29, 22
        s_cbranch_scc1 L_helper
        """)
    if g1:
        if C.arr1 == 24:
            a("""
            s_lshr_b32 s30, s28, 1
            s_mul_i32 s30, s30, 22
            s_add_u32 s30, s30, s29      ; t
            s_and_b32 s31, s30, 3
            s_lshr_b32 s30, s30, 2       ; ft
            s_and_b32 s28, s28, 1
            s_lshl_b32 s28, s28, 2
            s_add_u32 s31, s31, s28      ; dt
            """)
        else:
            a("""
            s_mul_i32 s30, s28, 22
            s_add_u32 s30, s30, s29      ; t
            s_and_b32 s31, s30, 7        ; dt
            s_lshr_b32 s30, s30, 3       ; ft
            """)
        if rot:
            a(f"s_mul_i32 s37, s29, {rot}")
            a(f"s_and_b32 s37, s37, 63")
    else:
        a("""
        s_and_b32 s31, s29, 7        ; dt
        s_lshr_b32 s30, s29, 3       ; 0..3
        """)
        if rot:
            a(f"s_mul_i32 s37, s30, 11")
            a(f"s_mul_i32 s38, s31, {rot-1}")
            a(f"s_add_u32 s37, s37, s38")
        a("""
        s_lshl_b32 s28, s28, 2
        s_add_u32 s30, s30, s28      ; st
        """)
    a("""
    s_lshl_b32 s30, s30, 6
    s_lshl_b32 s31, s31, 6
    """)
    a(f"""
    v_lshrrev_b32 v4, 3, v1       ; l>>3
    v_lshl_add_u32 v4, v2, 3, v4  ; row = 8w + l>>3
    s_mov_b32 s33, {ROWB}
    v_mul_lo_u32 v3, v4, s33
    v_bfe_u32 v5, v1, 4, 1        ; (l>>4)&1
    v_and_b32 v6, 1, v2
    v_lshl_or_b32 v5, v6, 1, v5   ; sw
    v_bfe_u32 v6, v1, 1, 2        ; p>>1
    v_xor_b32 v6, v6, v5
    v_and_b32 v7, 1, v1
    v_lshl_or_b32 v6, v6, 1, v7   ; srcchunk
    v_lshl_add_u32 v3, v6, 4, v3
    s_lshl_b32 s33, s30, 1
    v_add_u32 v3, s33, v3         ; + col0*2
    """)
    a("""
    v_lshrrev_b32 v5, 4, v1       ; g
    v_and_b32 v6, 15, v1          ; n
    v_lshl_add_u32 v4, v5, 9, v6
    v_lshl_add_u32 v4, v2, 4, v4
    v_add_u32 v4, s31, v4
    v_lshlrev_b32 v4, 4, v4
    """)
    a(f"""
    s_mov_b32 s10, {W_BYTES}
    s_mov_b32 s11, 0x20000
    s_mov_b32 s14, {HF_BYTES if g1 else UF_BYTES}
    s_mov_b32 s15, 0x20000
    s_mov_b32 s22, {2752 if g1 else 4096}
    s_mov_b32 s23, 0x20000
    s_mov_b32 s18, {UF_BYTES if g1 else HF_BYTES}
    s_mov_b32 s19, 0x20000
    s_lshl_b32 s34, s32, 10
    """)
    if rot:
        a(f"s_mul_i32 s35, s37, {32*ROWB}")
        a(f"s_lshl_b32 s36, s37, 15")
    else:
        a("s_mov_b32 s35, 0")
        a("s_mov_b32 s36, 0")
    a("""
    s_waitcnt lgkmcnt(0)
    s_mov_b32 s8, s4
    s_mov_b32 s9, s5
    """)
    ACC = 20
    BIAS = 36
    FR = 44
    HR = 76
    if g1:
        a(f"""
        s_mov_b32 s12, s6
        s_mov_b32 s13, s7
        s_add_u32 s16, s6, {UF_OFF}
        s_addc_u32 s17, s7, 0
        """)
    else:
        a(f"""
        s_add_u32 s12, s6, {UF_OFF}
        s_addc_u32 s13, s7, 0
        s_mov_b32 s16, s24
        s_mov_b32 s17, s25
        """)
    def issue_ks(ks):
        if C.nomem and ks >= (LA+1)*GS: return
        slot = ks % RING
        a(f"s_add_u32 m0, s34, {slot*4096}")
        a(f"buffer_load_dwordx4 {vr(HR+4*slot,4)}, v4, s[12:15], s36 offen {apol}")
        a(f"buffer_load_dwordx4 v3, s[8:11], s35 offen {wpol} lds")
        a(f"s_add_u32 s35, s35, {32*ROWB}")
        a(f"s_add_u32 s36, s36, 32768")
        if rot:
            a(f"s_cmp_eq_u32 s36, {NK*32768}")
            a(f"s_cselect_b32 s35, 0, s35")
            a(f"s_cselect_b32 s36, 0, s36")
    def issue_group(g):
        for ks in groups[g]: issue_ks(ks)
    st.stamp()
    for g in range(min(LA+1, NG)):
        issue_group(g)
    issued = min(LA+1, NG)
    if g1:
        a("""
        v_lshlrev_b32 v16, 3, v5
        s_lshl_b32 s33, s30, 1
        v_add_u32 v16, s33, v16
        """)
        for fb in range(4):
            a(f"buffer_load_dwordx2 {vr(BIAS+2*fb,2)}, v16, s[20:23], 0 offen offset:{32*fb}")
    else:
        a("""
        v_add_u32 v16, s30, v6
        v_lshlrev_b32 v16, 1, v16
        """)
        for sb in range(4):
            a(f"buffer_load_ushort {vr(BIAS+sb)}, v16, s[20:23], 0 offen offset:{32*sb}")
    bias_after = issued - 1
    a("""
    v_bfe_u32 v7, v1, 2, 2        ; r
    v_lshl_add_u32 v16, v5, 3, v7 ; row = 8g + r
    v_lshlrev_b32 v16, 7, v16     ; row*128
    v_and_b32 v17, 3, v1          ; c
    v_lshl_add_u32 v16, v17, 3, v16
    v_bfe_u32 v17, v1, 3, 1       ; (r>>1)&1
    v_and_b32 v18, 1, v5
    v_lshl_or_b32 v17, v18, 1, v17 ; sw
    """)
    for fb in range(4):
        a(f"v_xor_b32 v18, {fb}, v17")
        a(f"v_lshl_add_u32 v{8+fb}, v18, 5, v16")
        a(f"v_add_u32 v{12+fb}, 0x10000, v{8+fb}")
    for i in range(16):
        a(f"v_mov_b32 v{ACC+i}, 0")
    def read1(ks, buf, fb):
        if C.nocomp & 1: return
        slot = ks % RING
        base = 8 if slot < 16 else 12
        off = (slot % 16) * 4096
        a(f"ds_read_b64_tr_b16 {vr(FR+16*buf+4*fb,2)}, v{base+fb} offset:{off}")
        a(f"ds_read_b64_tr_b16 {vr(FR+16*buf+4*fb+2,2)}, v{base+fb} offset:{off+512}")
    def mfma1(ks, buf, fb):
        if C.nocomp & 2: return
        slot = ks % RING
        w = vr(FR+16*buf+4*fb,4); h = vr(HR+4*slot,4); c = vr(ACC+4*fb,4)
        if g1: a(f"v_mfma_f32_16x16x32_bf16 {c}, {w}, {h}, {c}")
        else:  a(f"v_mfma_f32_16x16x32_bf16 {c}, {h}, {w}, {c}")
    def outstanding_after(g):
        n = sum(2*len(groups[x]) for x in range(g+1, issued))
        if g <= bias_after: n += 4
        return n
    st.stamp()
    a(f"s_waitcnt vmcnt({outstanding_after(0)})")
    a("s_barrier")
    st.stamp()
    buf = 0
    for fb in range(4): read1(0, 0, fb)
    for g in range(NG):
        kss = groups[g]
        for i, ks in enumerate(kss):
            last = i == len(kss)-1
            if last and g+1 < NG:
                a(f"s_waitcnt vmcnt({outstanding_after(g+1)})")
                a("s_barrier")
            for fb in range(4):
                if ks+1 < NK:
                    a("s_waitcnt lgkmcnt(6)")
                else:
                    a(f"s_waitcnt lgkmcnt({6-2*fb})")
                mfma1(ks, buf, fb)
                if ks+1 < NK: read1(ks+1, buf^1, fb)
            if last and g+1 < NG and issued < NG:
                assert issued % RG == (g-1) % RG
                issue_group(issued); issued += 1
            buf ^= 1
    a("s_nop 7")
    st.stamp()
    T = 44
    if g1:
        c0 = -2.0*math.sqrt(2.0/math.pi)*math.log2(math.e)
        c1 = c0*0.044715
        a(f"s_mov_b32 s40, {hex(f2u(c1))}")
        a(f"v_mov_b32 v19, {hex(f2u(c0))}")
        a("s_mov_b32 s41, 0xffff0000")
        a("""
        v_lshrrev_b32 v16, 1, v5
        s_lshr_b32 s33, s30, 3
        v_add_u32 v16, s33, v16
        v_lshl_add_u32 v16, v16, 9, v6
        v_lshl_add_u32 v16, v2, 4, v16
        v_add_u32 v16, s31, v16
        v_lshlrev_b32 v16, 4, v16
        v_and_b32 v17, 1, v5
        v_lshl_add_u32 v16, v17, 3, v16
        """)
        for fb in range(4):
            for r in range(4):
                b = BIAS+2*fb+(r>>1)
                t = T+4*fb+r
                if r&1: a(f"v_and_b32 v{t}, s41, v{b}")
                else: a(f"v_lshlrev_b32 v{t}, 16, v{b}")
                a(f"v_add_f32 v{ACC+4*fb+r}, v{ACC+4*fb+r}, v{t}")
            for r in range(4):
                u = ACC+4*fb+r; t = T+4*fb+r
                a(f"v_mul_f32 v{t}, v{u}, v{u}")
            for r in range(4):
                u = ACC+4*fb+r; t = T+4*fb+r
                a(f"v_fma_f32 v{t}, v{t}, s40, v19")
            for r in range(4):
                u = ACC+4*fb+r; t = T+4*fb+r
                a(f"v_mul_f32 v{t}, v{t}, v{u}")
            for r in range(4):
                t = T+4*fb+r
                a(f"v_exp_f32 v{t}, v{t}")
            a("s_nop 0")
            for r in range(4):
                t = T+4*fb+r
                a(f"v_add_f32 v{t}, 1.0, v{t}")
            for r in range(4):
                t = T+4*fb+r
                a(f"v_rcp_f32 v{t}, v{t}")
            a("s_nop 0")
            for r in range(4):
                u = ACC+4*fb+r; t = T+4*fb+r
                a(f"v_mul_f32 v{t}, v{t}, v{u}")
            a(f"v_cvt_pk_bf16_f32 v{T+4*fb}, v{T+4*fb}, v{T+4*fb+1}")
            a(f"v_cvt_pk_bf16_f32 v{T+4*fb+1}, v{T+4*fb+2}, v{T+4*fb+3}")
            a(f"s_mov_b32 s33, {fb*2*8192}")
            a(f"buffer_store_dwordx2 {vr(T+4*fb,2)}, v16, s[16:19], s33 offen {C.u_st}")
    else:
        a("""
        v_add_u32 v16, s30, v6
        v_lshlrev_b32 v16, 9, v16
        v_lshl_add_u32 v16, v2, 4, v16
        v_lshl_add_u32 v16, v5, 2, v16
        v_add_u32 v16, s31, v16
        v_lshlrev_b32 v16, 1, v16
        """)
        for sb in range(4):
            a(f"v_lshlrev_b32 v{BIAS+sb}, 16, v{BIAS+sb}")
            for r in range(4):
                a(f"v_add_f32 v{ACC+4*sb+r}, v{ACC+4*sb+r}, v{BIAS+sb}")
            a(f"v_cvt_pk_bf16_f32 v{T+4*sb}, v{ACC+4*sb}, v{ACC+4*sb+1}")
            a(f"v_cvt_pk_bf16_f32 v{T+4*sb+1}, v{ACC+4*sb+2}, v{ACC+4*sb+3}")
            a(f"s_mov_b32 s33, {sb*16*1024}")
            a(f"buffer_store_dwordx2 {vr(T+4*sb,2)}, v16, s[16:19], s33 offen {C.out_st}")
    st.stamp()
    st.flush(6, "s32", name)
    a.label(f"L_{name}_done")
    a("s_endpgm")
    if g1 and C.helpers:
        a.label("L_helper")
        a(f"""
        s_sub_u32 s29, s29, 22
        s_lshl_b32 s29, s29, 2
        s_add_u32 s29, s29, s32       ; wi 0..39
        s_mov_b32 s14, {HF_BYTES}
        s_mov_b32 s15, 0x20000
        s_mov_b32 s26, {W_BYTES}
        s_mov_b32 s27, 0x20000
        s_waitcnt lgkmcnt(0)
        s_mov_b32 s12, s6
        s_mov_b32 s13, s7
        """)
        if C.hpf:
            if C.arr1 == 18:
                a("""
                v_lshlrev_b32 v3, 7, v1
                s_lshl_b32 s30, s29, 13
                """)
                for i in range(7):
                    a(f"buffer_load_dword v{8+i}, v3, s[12:15], s30 offen {C.h_pol}")
                    a(f"s_add_u32 s30, s30, {40*8192}")
            else:
                a("""
                v_and_b32 v3, 31, v1
                v_lshlrev_b32 v3, 7, v3
                v_lshrrev_b32 v4, 5, v1
                v_lshl_add_u32 v3, v4, 13, v3
                s_and_b32 s31, s28, 1
                s_lshl_b32 s31, s31, 12
                s_lshl_b32 s30, s29, 14
                s_add_u32 s30, s30, s31
                """)
                for i in range(4):
                    a(f"buffer_load_dword v{8+i}, v3, s[12:15], s30 offen {C.h_pol}")
                    a(f"s_add_u32 s30, s30, {40*16384}")
        if C.w2pf:
            a("""
            v_lshrrev_b32 v3, 2, v1
            v_lshlrev_b32 v3, 12, v3
            v_and_b32 v4, 3, v1
            v_lshl_add_u32 v3, v4, 7, v3
            s_lshl_b32 s30, s28, 9
            s_lshl_b32 s31, s29, 16
            s_add_u32 s30, s30, s31
            """)
            for i in range(3):
                a(f"buffer_load_dword v{16+i}, v3, s[24:27], s30 offen {C.w2pf_pol}")
                a(f"s_add_u32 s30, s30, {40*65536}")
        a("s_endpgm")
    return HR + 4*RING, RING*4096

def main(out, opts):
    for o in opts:
        k, v = o.split('=')
        if k == 'stamp': stamps.STAMP = bool(int(v)); continue
        cur = getattr(C, k)
        setattr(C, k, int(v) if isinstance(cur, int) else v.replace('_', ' '))
    body = Asm()
    gen_ln(body)
    nv1, lds1 = gen_gemm(body, 1)
    nv2, lds2 = gen_gemm(body, 2)
    a = Asm()
    a.raw(HEADER.rstrip('\n'))
    lds1 = max(lds1, 84*1024); lds2 = max(lds2, 84*1024)
    a.raw(f"; @launch kernel=ln_kernel grid=(256,1,1) block=({128 if C.w1pf else 64},1,1) lds=0")
    a.raw(f"; @launch kernel=gemm1_kernel grid=({256 if C.helpers else 176},1,1) block=(256,1,1) lds={lds1}")
    if C.dup: a.raw(f"; @launch kernel=gemm1_kernel grid=({256 if C.helpers else 176},1,1) block=(256,1,1) lds={lds1}")
    a.raw(f"; @launch kernel=gemm2_kernel grid=(256,1,1) block=(256,1,1) lds={lds2}")
    if C.dup: a.raw(f"; @launch kernel=gemm2_kernel grid=(256,1,1) block=(256,1,1) lds={lds2}")
    a.raw('.amdgcn_target "amdgcn-amd-amdhsa--gfx950"')
    a.raw(".text")
    a.lines += body.lines
    a.raw('.section .rodata,"a"')
    a.raw(kernel_desc("ln_kernel", 128, 100))
    a.raw(kernel_desc("gemm1_kernel", nv1, 100))
    a.raw(kernel_desc("gemm2_kernel", nv2, 100))
    open(out, 'w').write(a.text())

if __name__ == "__main__":
    main(sys.argv[1], sys.argv[2:])
```

```python
import sys, math
from asmlib import *
import stamps
from stamps import Stamps

HF_BYTES = 2048*512*2
UF_OFF = HF_BYTES
UF_BYTES = 172*8192
F_OFF = 4 << 20
F2_REL = 64*128
F_BYTES = (64+176)*128
W_BYTES = 2048*2752
NAME = "standalone__mixer_token_mlp__prompt_kernel"

class Cfg:
    LA = 3
    rot1 = 1
    rot2 = 1
    NSLOT = 10
    early_w2 = 6
    sleep = 1
    TMO = 30000
    nocomp = 0
    now = 0
    noa = 0
    apol = 'sc1'
    rotf = 3
    hdelay = 0
    gdelay = 0
C = Cfg()

P_X, P_W1, P_B1, P_W2, P_B2, P_OUT, P_DBG, P_WS = 4, 6, 8, 10, 12, 14, 16, 18
S_W, S_ACT, S_BIAS, S_OUT, S_FLAG, S_DBG = 20, 24, 28, 32, 36, 40
sX, sJ, sWAVE, sCOL, sD0, sWBIT, sABIT, sLDS, sT, sT2, sKW, sKA, sOW, sOA, sCNT, sFT, sC1, sMASK = range(44, 62)
ACC = 24; BIAS = 88; FR = 96; HR = 112

def srd(a, s, lo, size, add=0):
    if add:
        a(f"s_add_u32 s{s}, s{lo}, {add}\ns_addc_u32 s{s+1}, s{lo+1}, 0")
    else:
        a(f"s_mov_b32 s{s}, s{lo}\ns_mov_b32 s{s+1}, s{lo+1}")
    a(f"s_mov_b32 s{s+2}, {size}\ns_mov_b32 s{s+3}, 0x20000")

class VM:
    def __init__(self): self.q = []
    def issue(self, tag): self.q.append(tag)
    def wait_for(self, a, tags):
        last = max((i for i, t in enumerate(self.q) if t in tags), default=-1)
        n = len(self.q) - 1 - last
        a(f"s_waitcnt vmcnt({min(n,63)})")
        self.q = self.q[last+1:]

def poll(a, label, vflagoff):
    a(f"""
    s_mov_b32 s{sCNT}, 0
    v_mov_b32 v7, 0
    L_poll_{label}:
    buffer_load_dword v3, v7, s[{S_DBG}:{S_DBG+3}], 0 offen sc1
    buffer_load_dword v4, v{vflagoff}, s[{S_FLAG}:{S_FLAG+3}], 0 offen sc1
    s_add_u32 s{sCNT}, s{sCNT}, 1
    s_waitcnt vmcnt(0)
    v_or_b32 v16, 1, v4
    v_cmp_ne_u32 vcc, v3, v16
    v_cmp_ne_u32 s[{sT}:{sT+1}], v3, v4
    s_or_b64 vcc, vcc, s[{sT}:{sT+1}]
    s_cbranch_scc0 L_polled_{label}
    s_sleep {C.sleep}
    s_cmp_lt_u32 s{sCNT}, {C.TMO}
    s_cbranch_scc1 L_poll_{label}
    L_polled_{label}:
    """)

def gemm_setup(a, g1):
    ROWB = 2752 if g1 else 4096
    a(f"""
    s_lshr_b32 s{sWBIT if g1 else sABIT}, s{sWAVE}, 1
    s_and_b32 s{sABIT if g1 else sWBIT}, s{sWAVE}, 1
    v_lshrrev_b32 v4, 3, v1
    s_mov_b32 s{sT}, {ROWB}
    v_mul_lo_u32 v3, v4, s{sT}
    v_bfe_u32 v5, v1, 4, 1
    v_lshlrev_b32 v5, 2, v5
    v_and_b32 v6, 7, v1
    v_xor_b32 v6, v6, v5
    v_lshl_add_u32 v3, v6, 4, v3
    s_lshl_b32 s{sT}, s{sCOL}, 1
    s_mul_i32 s{sT2}, s{sWAVE}, {32*ROWB}
    s_add_u32 s{sT}, s{sT}, s{sT2}
    v_add_u32 v8, s{sT}, v3
    v_add_u32 v9, {1*(8*ROWB-1024)}, v8
    v_add_u32 v10, {2*(8*ROWB-1024)}, v8
    v_add_u32 v11, {3*(8*ROWB-1024)}, v8
    """)
def gemm_setup2(a, g1):
    a(f"""
    v_lshrrev_b32 v5, 5, v1
    v_and_b32 v6, 31, v1
    v_lshl_add_u32 v4, v5, 9, v6
    v_add_u32 v4, s{sD0}, v4
    v_lshlrev_b32 v4, 4, v4
    s_lshl_b32 s{sT}, s{sABIT}, 9
    s_lshl_b32 s{sT2}, s{sWAVE}, 15
    s_add_u32 s{sT}, s{sT}, s{sT2}
    v_add_u32 v12, s{sT}, v4
    v_xor_b32 v13, 0x200, v12
    v_add_u32 v14, 0x4000, v12
    v_add_u32 v15, 0x4000, v13
    v_bfe_u32 v7, v1, 2, 2
    v_lshl_add_u32 v16, v5, 3, v7
    v_lshlrev_b32 v16, 7, v16
    v_and_b32 v17, 3, v1
    v_lshl_add_u32 v16, v17, 3, v16
    v_bfe_u32 v17, v1, 4, 1
    v_lshl_add_u32 v16, v17, 5, v16
    v_bfe_u32 v17, v1, 3, 1
    v_xor_b32 v17, s{sWBIT}, v17
    v_lshl_add_u32 v16, v17, 6, v16
    v_add_u32 v18, s{sLDS}, v16
    v_xor_b32 v19, 64, v18
    """)

def adv_k(g1, sk):
    if g1: return f"s_add_u32 s{sk}, s{sk}, 1\ns_and_b32 s{sk}, s{sk}, 15"
    return f"s_add_u32 s{sk}, s{sk}, 1\ns_cmp_eq_u32 s{sk}, 11\ns_cselect_b32 s{sk}, 0, s{sk}"

def w_dma(g1, n):
    ROWB = 2752 if g1 else 4096
    slot = n % C.NSLOT
    S = f"s[{S_W}:{S_W+3}]"
    return [f"s_add_u32 m0, s{sLDS}, {slot*4096}\ns_mul_i32 s{sOW}, s{sKW}, {128*ROWB}\nbuffer_load_dwordx4 v8, {S}, s{sOW} offen lds",
            f"buffer_load_dwordx4 v9, {S}, s{sOW} offen offset:1024 lds",
            f"buffer_load_dwordx4 v10, {S}, s{sOW} offen offset:2048 lds",
            f"buffer_load_dwordx4 v11, {S}, s{sOW} offen offset:3072 lds\n" + adv_k(g1, sKW)]
def a_ld(g1, n):
    R = C.LA + 1
    slot = n % R
    S = f"s[{S_ACT}:{S_ACT+3}]"
    return [f"s_lshl_b32 s{sOA}, s{sKA}, 17\nbuffer_load_dwordx4 {vr(HR+16*slot+0,4)}, v12, {S}, s{sOA} offen {C.apol}",
            f"buffer_load_dwordx4 {vr(HR+16*slot+4,4)}, v13, {S}, s{sOA} offen {C.apol}",
            f"buffer_load_dwordx4 {vr(HR+16*slot+8,4)}, v14, {S}, s{sOA} offen {C.apol}",
            f"buffer_load_dwordx4 {vr(HR+16*slot+12,4)}, v15, {S}, s{sOA} offen {C.apol}\n" + adv_k(g1, sKA)]

def gemm_loop(a, g1, st):
    NS = 16 if g1 else 11
    LA = C.LA; R = LA+1
    vm = VM()
    def reads(n, h2):
        off = (n % C.NSLOT)*4096 + h2*2048
        out = []
        if C.nocomp & 1: return ["", "", "", ""]
        for cb in range(2):
            out.append(f"ds_read_b64_tr_b16 {vr(FR+8*h2+4*cb,2)}, v{18+cb} offset:{off}")
            out.append(f"ds_read_b64_tr_b16 {vr(FR+8*h2+4*cb+2,2)}, v{18+cb} offset:{off+512}")
        return out
    def mfma(n, h2, cb, db):
        if C.nocomp & 2: return ""
        slot = n % R
        w = vr(FR+8*h2+4*cb,4); h = vr(HR+16*slot+8*h2+4*db,4)
        i = (2*cb+db) if g1 else (2*db+cb)
        c = vr(ACC+16*i,16)
        if g1: return f"v_mfma_f32_32x32x16_bf16 {c}, {w}, {h}, {c}"
        return f"v_mfma_f32_32x32x16_bf16 {c}, {h}, {w}, {c}"
    for n in range(LA):
        for i, s in enumerate(a_ld(g1, n)): a(s); vm.issue(('a', n, i>>1))
    for s in reads(0, 0): a(s)
    for n in range(NS):
        for h2 in range(2):
            ld = []; tags = []
            if h2 == 0 and n+LA < NS and not C.noa:
                ld = a_ld(g1, n+LA); tags = [('a', n+LA, i>>1) for i in range(4)]
            if h2 == 1 and n >= 1 and n-1+C.NSLOT < NS and not C.now:
                ld = w_dma(g1, n-1+C.NSLOT); tags = [('w', n-1+C.NSLOT)]*4
            need = {('a', n, h2)}
            if h2 == 0:
                rd = reads(n, 1)
            elif n+1 < NS:
                rd = reads(n+1, 0); need.add(('w', n+1))
            else:
                rd = []
            vm.wait_for(a, need)
            k = 0
            for cb in range(2):
                for db in range(2):
                    if db == 0:
                        newer = (2 if cb == 0 else 0) + (k if rd else 0)
                        a(f"s_waitcnt lgkmcnt({newer})")
                    a(mfma(n, h2, cb, db))
                    if rd: a(rd[k])
                    if ld: a(ld[k]); vm.issue(tags[k])
                    k += 1
    st.stamp()
    a(f"""
    v_lshlrev_b32 v16, 4, v1
    v_add_u32 v17, s{sLDS}, v16
    s_nop 11
    """)
    for i in range(1, 4):
        for j in range(4):
            a(f"ds_write_b128 v17, {vr(ACC+16*i+4*j,4)} offset:{(i-1)*4096+j*1024}")
    for i in range(1, 4):
        a(f"s_xor_b32 s{sT}, s{sWAVE}, {i}")
        a(f"s_mul_i32 s{sT}, s{sT}, {C.NSLOT*4096}")
        a(f"v_add_u32 v{19+i}, s{sT}, v16")
    a("s_waitcnt lgkmcnt(0)")
    a("s_barrier")
    for i in range(1, 4):
        for j in range(4):
            a(f"ds_read_b128 {vr(ACC+16*i+4*j,4)}, v{19+i} offset:{(i-1)*4096+j*1024}")
    T = HR
    if g1:
        c0 = -2.0*math.sqrt(2.0/math.pi)*math.log2(math.e)
        c1 = c0*0.044715
        a(f"""
        s_mov_b32 s{sC1}, {hex(f2u(c1))}
        v_mov_b32 v22, {hex(f2u(c0))}
        v_mov_b32 v23, {hex(f2u(c0))}
        s_lshl_b32 s{sT}, s{sWBIT}, 5
        s_add_u32 s{sT}, s{sT}, s{sCOL}
        s_lshl_b32 s{sT}, s{sT}, 6
        s_add_u32 s{sT}, s{sT}, s{sD0}
        s_lshl_b32 s{sT2}, s{sABIT}, 5
        s_add_u32 s{sT}, s{sT}, s{sT2}
        v_lshl_add_u32 v16, v5, 9, v6
        v_add_u32 v16, s{sT}, v16
        v_lshlrev_b32 v16, 4, v16
        """)
    else:
        a(f"""
        s_lshl_b32 s{sT}, s{sWBIT}, 5
        s_add_u32 s{sT}, s{sT}, s{sCOL}
        v_add_u32 v16, s{sT}, v6
        v_lshlrev_b32 v16, 9, v16
        v_lshl_add_u32 v16, v5, 3, v16
        s_lshl_b32 s{sT2}, s{sABIT}, 5
        s_add_u32 s{sT2}, s{sT2}, s{sD0}
        v_add_u32 v16, s{sT2}, v16
        v_lshlrev_b32 v16, 1, v16
        """)
    for i in range(1, 4):
        for j in range(4):
            a(f"s_waitcnt lgkmcnt({11-((i-1)*4+j)})")
            a(f"v_pk_add_f32 {vr(ACC+4*j,2)}, {vr(ACC+4*j,2)}, {vr(ACC+16*i+4*j,2)}")
            a(f"v_pk_add_f32 {vr(ACC+4*j+2,2)}, {vr(ACC+4*j+2,2)}, {vr(ACC+16*i+4*j+2,2)}")
    if g1:
        for q in range(0,16,2): a(f"v_pk_mul_f32 {vr(T+q,2)}, {vr(ACC+q,2)}, {vr(ACC+q,2)}")
        for q in range(0,16,2): a(f"v_pk_fma_f32 {vr(T+q,2)}, {vr(T+q,2)}, s[{sC1}:{sC1+1}], v[22:23] op_sel_hi:[1,0,1]")
        for q in range(0,16,2): a(f"v_pk_mul_f32 {vr(T+q,2)}, {vr(T+q,2)}, {vr(ACC+q,2)}")
        for q in range(16): a(f"v_exp_f32 v{T+q}, v{T+q}")
        for q in range(0,16,2): a(f"v_pk_add_f32 {vr(T+q,2)}, {vr(T+q,2)}, 1.0 op_sel_hi:[1,0]")
        for q in range(16): a(f"v_rcp_f32 v{T+q}, v{T+q}")
        for q in range(0,16,2): a(f"v_pk_mul_f32 {vr(ACC+q,2)}, {vr(T+q,2)}, {vr(ACC+q,2)}")
    P = T+16
    for j in range(4):
        a(f"v_cvt_pk_bf16_f32 v{P+2*j}, v{ACC+4*j}, v{ACC+4*j+1}")
        a(f"v_cvt_pk_bf16_f32 v{P+2*j+1}, v{ACC+4*j+2}, v{ACC+4*j+3}")
    a("s_nop 1")
    for jp in range(2):
        a(f"v_permlane32_swap_b32 v{P+4*jp}, v{P+4*jp+2}")
        a(f"v_permlane32_swap_b32 v{P+4*jp+1}, v{P+4*jp+3}")
    for jp in range(2):
        if g1:
            a(f"s_mov_b32 s{sT}, {jp*2*8192}")
            a(f"buffer_store_dwordx4 {vr(P+4*jp,4)}, v16, s[{S_OUT}:{S_OUT+3}], s{sT} offen sc1")
        else:
            a(f"buffer_store_dwordx4 {vr(P+4*jp,4)}, v16, s[{S_OUT}:{S_OUT+3}], 0 offen offset:{32*jp}")

def acc_init(a, g1):
    if g1:
        for j in range(4):
            for r in range(4):
                b = BIAS+2*j+(r>>1)
                if r&1: a(f"v_and_b32 v{ACC+4*j+r}, 0xffff0000, v{b}")
                else: a(f"v_lshlrev_b32 v{ACC+4*j+r}, 16, v{b}")
    else:
        for q in range(16): a(f"v_lshlrev_b32 v{ACC+q}, 16, v{BIAS}")
def acc_zero(a):
    for i in range(16, 64): a(f"v_mov_b32 v{ACC+i}, 0")

def gen_ln(a, st):
    srd(a, S_W, P_X, HF_BYTES)
    srd(a, S_OUT, P_WS, HF_BYTES)
    a(f"""
    s_lshl_b32 s{sT}, s{sFT}, 2
    s_add_u32 s{sT}, s{sT}, s{sWAVE}
    s_lshl_b32 s{sOW}, s{sT}, 13
    s_add_u32 s{sOA}, s{sOW}, 4096
    v_lshlrev_b32 v2, 4, v1
    """)
    for j in range(8):
        a(f"buffer_load_dwordx4 {vr(4+4*j,4)}, v2, s[{S_W}:{S_W+3}], s{sOW if j<4 else sOA} offen offset:{(j&3)*1024}")
    E = 40
    def e(j,i): return E+8*j+i
    S = 104
    SM = 64+0
    a(f"s_mov_b32 s{sMASK}, 0xffff0000")
    for j in range(8):
        a(f"s_waitcnt vmcnt({7-j})")
        for i in range(4):
            a(f"v_lshlrev_b32 {vr(e(j,2*i))}, 16, {vr(4+4*j+i)}")
            a(f"v_and_b32 {vr(e(j,2*i+1))}, s{sMASK}, {vr(4+4*j+i)}")
        a(f"v_pk_add_f32 {vr(S+2*j,2)}, {vr(e(j,0),2)}, {vr(e(j,2),2)}")
        a(f"v_pk_add_f32 v[120:121], {vr(e(j,4),2)}, {vr(e(j,6),2)}")
        a(f"v_pk_add_f32 {vr(S+2*j,2)}, {vr(S+2*j,2)}, v[120:121]")
        a(f"v_add_f32 {vr(S+2*j)}, {vr(S+2*j)}, {vr(S+2*j+1)}")
    st.stamp()
    def reduce8():
        a("s_nop 1")
        for p in range(4): a(f"v_permlane32_swap_b32 {vr(S+4*p)}, {vr(S+4*p+2)}")
        a("s_nop 1")
        for p in range(4): a(f"v_add_f32 {vr(S+4*p)}, {vr(S+4*p)}, {vr(S+4*p+2)}")
        a("s_nop 1")
        a(f"v_permlane16_swap_b32 {vr(S)}, {vr(S+4)}")
        a(f"v_permlane16_swap_b32 {vr(S+8)}, {vr(S+12)}")
        a("s_nop 1")
        a(f"v_add_f32 {vr(S)}, {vr(S)}, {vr(S+4)}")
        a(f"v_add_f32 {vr(S+8)}, {vr(S+8)}, {vr(S+12)}")
        for sh in (8,4,2,1):
            a("s_nop 1")
            a(f"v_add_f32_dpp {vr(S)}, {vr(S)}, {vr(S)} row_ror:{sh} row_mask:0xf bank_mask:0xf")
            a(f"v_add_f32_dpp {vr(S+8)}, {vr(S+8)}, {vr(S+8)} row_ror:{sh} row_mask:0xf bank_mask:0xf")
    SC = [24, 26, 28, 30, 56, 58, 60, 62]
    def readl():
        a("s_nop 1")
        order = {0:(S,0), 2:(S,16), 1:(S,32), 3:(S,48), 4:(S+8,0), 6:(S+8,16), 5:(S+8,32), 7:(S+8,48)}
        for j in range(8):
            r, ln = order[j]
            a(f"v_readlane_b32 s{SC[j]}, {vr(r)}, {ln}")
        a("s_nop 1")
    reduce8()
    a(f"v_mul_f32 {vr(S)}, {hex(f2u(-1.0/512))}, {vr(S)}")
    a(f"v_mul_f32 {vr(S+8)}, {hex(f2u(-1.0/512))}, {vr(S+8)}")
    readl()
    for j in range(8):
        for i in range(4):
            a(f"v_pk_add_f32 {vr(e(j,2*i),2)}, {vr(e(j,2*i),2)}, s[{SC[j]}:{SC[j]+1}] op_sel_hi:[1,0]")
        a(f"v_pk_mul_f32 {vr(S+2*j,2)}, {vr(e(j,0),2)}, {vr(e(j,0),2)}")
        for i in range(1,4):
            a(f"v_pk_fma_f32 {vr(S+2*j,2)}, {vr(e(j,2*i),2)}, {vr(e(j,2*i),2)}, {vr(S+2*j,2)}")
        a(f"v_add_f32 {vr(S+2*j)}, {vr(S+2*j)}, {vr(S+2*j+1)}")
    reduce8()
    a(f"v_mov_b32 v122, {hex(f2u(1e-5))}")
    a(f"v_mov_b32 v123, {hex(f2u(1.0/512))}")
    a(f"v_fma_f32 {vr(S)}, {vr(S)}, v123, v122")
    a(f"v_fma_f32 {vr(S+8)}, {vr(S+8)}, v123, v122")
    a(f"v_rsq_f32 {vr(S)}, {vr(S)}")
    a(f"v_rsq_f32 {vr(S+8)}, {vr(S+8)}")
    readl()
    a(f"""
    v_and_b32 v126, 7, v1
    v_lshlrev_b32 v124, 7, v1
    v_lshl_add_u32 v124, v126, 4, v124
    v_add_u32 v124, s{sLDS}, v124
    v_lshrrev_b32 v127, 3, v1
    v_xor_b32 v126, v126, v127
    v_lshlrev_b32 v125, 7, v127
    v_lshl_add_u32 v125, v126, 4, v125
    v_add_u32 v125, s{sLDS}, v125
    """)
    for j in range(8):
        for i in range(4):
            a(f"v_pk_mul_f32 {vr(e(j,2*i),2)}, {vr(e(j,2*i),2)}, s[{SC[j]}:{SC[j]+1}] op_sel_hi:[1,0]")
    for i in range(8):
        for jj in range(4):
            a(f"v_cvt_pk_bf16_f32 {vr(4+4*i+jj)}, {vr(e(2*jj,i))}, {vr(e(2*jj+1,i))}")
        a(f"v_xor_b32 v126, {i<<4}, v124")
        a(f"ds_write_b128 v126, {vr(4+4*i,4)}")
    a("s_waitcnt lgkmcnt(0)")
    for q in range(8):
        a(f"ds_read_b128 {vr(40+4*q,4)}, v125 offset:{1024*q}")
    a(f"""
    s_lshl_b32 s{sT}, s{sFT}, 2
    s_add_u32 s{sT}, s{sT}, s{sWAVE}
    s_lshl_b32 s{sT}, s{sT}, 13
    s_add_u32 s{sT2}, s{sT}, 4096
    """)
    for q in range(8):
        a(f"s_waitcnt lgkmcnt({7-q})")
        a(f"buffer_store_dwordx4 {vr(40+4*q,4)}, v2, s[{S_OUT}:{S_OUT+3}], s{sT if q<4 else sT2} offen offset:{(q&3)*1024} sc1")
    st.stamp()

def nonce_get(a, label):
    a(f"""
    s_mov_b32 s{sCNT}, 0
    v_mov_b32 v7, 0
    L_nonce_{label}:
    buffer_load_dword v3, v7, s[{S_DBG}:{S_DBG+3}], 0 offen sc1
    s_add_u32 s{sCNT}, s{sCNT}, 1
    s_waitcnt vmcnt(0)
    v_cmp_eq_u32 vcc, 0, v3
    s_cbranch_vccz L_nonced_{label}
    s_cmp_lt_u32 s{sCNT}, {C.TMO}
    s_cbranch_scc1 L_nonce_{label}
    L_nonced_{label}:
    """)

def g2_decode(a):
    a(f"""
    s_and_b32 s{sKW}, s{sJ}, 7
    s_lshr_b32 s{sT}, s{sX}, 1
    s_lshl_b32 s{sT}, s{sT}, 3
    s_add_u32 s{sCOL}, s{sT}, s{sKW}
    s_lshl_b32 s{sCOL}, s{sCOL}, 6
    s_and_b32 s{sT}, s{sX}, 1
    s_lshl_b32 s{sT}, s{sT}, 2
    s_lshr_b32 s{sD0}, s{sJ}, 3
    s_add_u32 s{sD0}, s{sD0}, s{sT}
    s_lshl_b32 s{sD0}, s{sD0}, 6
    """)
    if not C.rot2: a(f"s_mov_b32 s{sKW}, 0")
    a(f"s_mov_b32 s{sKA}, s{sKW}")
    srd(a, S_W, P_W2, W_BYTES)
    gemm_setup(a, False)

def main(out, opts):
    for o in opts:
        k, v = o.split('=')
        if k == 'stamp': stamps.STAMP = bool(int(v)); continue
        if k == 'cyc': stamps.CYC = bool(int(v)); continue
        cur = getattr(C, k)
        setattr(C, k, int(v) if isinstance(cur, int) else v.replace('_', ' '))
    a = Asm()
    a.raw(HEADER.rstrip('\n'))
    a.raw(f"; @launch grid=(256,1,1) block=(256,1,1) lds={4*C.NSLOT*4096}")
    a.raw('.amdgcn_target "amdgcn-amd-amdhsa--gfx950"')
    a.raw(".text")
    kernel_begin(a, NAME)
    a("s_cmp_ge_u32 s2, 256\ns_cbranch_scc1 L_done")
    st = Stamps(a, 0)
    st.stamp()
    a(f"""
    s_load_dwordx16 s[4:19], s[0:1], 0
    s_memrealtime s[62:63]
    s_and_b32 s{sX}, s2, 7
    s_lshr_b32 s{sJ}, s2, 3
    v_and_b32 v1, 63, v0
    v_lshrrev_b32 v2, 6, v0
    s_nop 0
    v_readfirstlane_b32 s{sWAVE}, v2
    s_nop 3
    s_mul_i32 s{sLDS}, s{sWAVE}, {C.NSLOT*4096}
    s_waitcnt lgkmcnt(0)
    """)
    srd(a, S_DBG, P_DBG, 256)
    srd(a, S_FLAG, P_WS, F_BYTES, F_OFF)
    a(f"""
    s_or_b32 s{sT}, s2, s{sWAVE}
    s_cmp_lg_u32 s{sT}, 0
    s_cbranch_scc1 L_nononce
    s_or_b32 s62, s62, 1
    v_mov_b32 v3, s62
    v_mov_b32 v7, 0
    buffer_store_dword v3, v7, s[{S_DBG}:{S_DBG+3}], 0 offen sc1
    L_nononce:
    s_cmp_ge_u32 s{sJ}, 22
    s_cbranch_scc1 L_helper
    """)
    a(f"""
    s_lshr_b32 s{sT}, s{sX}, 1
    s_mul_i32 s{sT}, s{sT}, 22
    s_add_u32 s{sT}, s{sT}, s{sJ}
    s_lshr_b32 s{sFT}, s{sT}, 2
    s_and_b32 s{sD0}, s{sT}, 3
    s_mul_i32 s{sKW}, s{sFT}, {C.rotf}
    s_lshl_b32 s{sT}, s{sD0}, 2
    s_add_u32 s{sKW}, s{sKW}, s{sT}
    s_and_b32 s{sKW}, s{sKW}, {15 if C.rot1 else 0}
    s_mov_b32 s{sKA}, s{sKW}
    s_and_b32 s{sT}, s{sX}, 1
    s_lshl_b32 s{sT}, s{sT}, 2
    s_add_u32 s{sD0}, s{sD0}, s{sT}
    s_lshl_b32 s{sD0}, s{sD0}, 6
    s_lshl_b32 s{sCOL}, s{sFT}, 6
    """)
    srd(a, S_W, P_W1, W_BYTES)
    gemm_setup(a, True)
    for i in range(C.gdelay): a("s_sleep 8")
    for n in range(C.NSLOT):
        for s in w_dma(True, n): a(s)
    st.stamp()
    gemm_setup2(a, True)
    srd(a, S_ACT, P_WS, HF_BYTES)
    srd(a, S_BIAS, P_B1, 2752)
    srd(a, S_OUT, P_WS, UF_BYTES, UF_OFF)
    a(f"""
    s_lshl_b32 s{sT}, s{sWBIT}, 5
    s_add_u32 s{sT}, s{sT}, s{sCOL}
    s_lshl_b32 s{sT}, s{sT}, 1
    v_lshlrev_b32 v16, 3, v5
    v_add_u32 v16, s{sT}, v16
    """)
    for j in range(4):
        a(f"buffer_load_dwordx2 {vr(BIAS+2*j,2)}, v16, s[{S_BIAS}:{S_BIAS+3}], 0 offen offset:{16*j}")
    acc_zero(a)
    a(f"""
    v_and_b32 v23, 15, v1
    v_lshlrev_b32 v23, 2, v23
    v_add_u32 v23, s{sWAVE}, v23
    v_lshlrev_b32 v23, 7, v23
    s_waitcnt vmcnt(0)
    """)
    acc_init(a, True)
    st.stamp()
    poll(a, "g1", 23)
    st.stamp()
    a("v_mov_b32 v2, v3")
    gemm_loop(a, True, st)
    st.stamp()
    a(f"""
    s_lshr_b32 s{sT}, s{sD0}, 6
    s_mul_i32 s{sT}, s{sT}, 22
    s_add_u32 s{sT}, s{sT}, s{sFT}
    s_lshl_b32 s{sT}, s{sT}, 7
    s_add_u32 s{sT}, s{sT}, {F2_REL}
    v_mov_b32 v23, s{sT}
    """)
    g2_decode(a)
    a("s_waitcnt vmcnt(0)")
    a("s_barrier")
    a(f"""
    s_cmp_lg_u32 s{sWAVE}, 0
    s_cbranch_scc1 L_g2
    buffer_store_dword v2, v23, s[{S_FLAG}:{S_FLAG+3}], 0 offen sc1
    s_branch L_g2
    """)
    a.label("L_helper")
    n_save = st.n
    st.n = 1
    a(f"""
    s_cmp_ge_u32 s{sJ}, 30
    s_cbranch_scc1 L_h2
    s_sub_u32 s{sFT}, s{sJ}, 22
    s_lshl_b32 s{sFT}, s{sFT}, 3
    s_add_u32 s{sFT}, s{sFT}, s{sX}
    """)
    gen_ln(a, st)
    nonce_get(a, "ln")
    st.stamp()
    a(f"""
    s_barrier
    s_cmp_lg_u32 s{sWAVE}, 0
    s_cbranch_scc1 L_h2
    s_lshl_b32 s{sT}, s{sFT}, 7
    v_mov_b32 v23, s{sT}
    buffer_store_dword v3, v23, s[{S_FLAG}:{S_FLAG+3}], 0 offen sc1
    L_h2:
    """)
    g2_decode(a)
    for i in range(C.hdelay): a("s_sleep 32")
    st.n = n_save
    a.label("L_g2")
    st.stamp()
    for n in range(C.NSLOT):
        for s in w_dma(False, n): a(s)
    gemm_setup2(a, False)
    srd(a, S_ACT, P_WS, UF_BYTES, UF_OFF)
    srd(a, S_BIAS, P_B2, 4096)
    srd(a, S_OUT, P_OUT, HF_BYTES)
    a(f"""
    s_lshl_b32 s{sT}, s{sWBIT}, 5
    s_add_u32 s{sT}, s{sT}, s{sCOL}
    v_add_u32 v16, s{sT}, v6
    v_lshlrev_b32 v16, 1, v16
    buffer_load_ushort v{BIAS}, v16, s[{S_BIAS}:{S_BIAS+3}], 0 offen
    """)
    acc_zero(a)
    a(f"""
    v_min_u32 v23, 10, v1
    v_lshlrev_b32 v23, 1, v23
    s_lshr_b32 s{sT}, s{sD0}, 6
    s_mul_i32 s{sT}, s{sT}, 22
    s_lshr_b32 s{sT2}, s{sWAVE}, 1
    s_add_u32 s{sT}, s{sT}, s{sT2}
    s_add_u32 s{sT}, s{sT}, 64
    v_add_u32 v23, s{sT}, v23
    v_lshlrev_b32 v23, 7, v23
    s_waitcnt vmcnt(0)
    """)
    acc_init(a, False)
    st.stamp()
    poll(a, "g2", 23)
    st.stamp()
    gemm_loop(a, False, st)
    st.stamp()
    st.flush(P_WS, f"s{sWAVE}", "f")
    a.label("L_done")
    a("s_endpgm")
    a.raw('.section .rodata,"a"')
    a.raw(kernel_desc(NAME, HR + 16*(C.LA+1), 100))
    open(out, 'w').write(a.text())

if __name__ == "__main__":
    main(sys.argv[1], sys.argv[2:])
```

```python
STAMP = False
CYC = False
ONLY = None
class Stamps:
    def __init__(self, a, kidx):
        self.a = a; self.k = kidx; self.n = 0
    def stamp(self, wait=True, force=False):
        if not STAMP: return
        if ONLY is not None and not force and self.n > 0 and self.cnt_skip(): return
        i = self.n; self.n += 1
        if i == 0:
            self.a("s_memtime s[92:93]")
            self.a("s_getreg_b32 s94, hwreg(HW_REG_XCC_ID)")
        self.a(f"{'s_memtime' if CYC else 's_memrealtime'} s[{64+2*i}:{65+2*i}]")
        if wait: self.a("s_waitcnt lgkmcnt(0)")
    def cnt_skip(self):
        self.seq = getattr(self, 'seq', 0) + 1
        return self.seq not in ONLY
    def flush(self, wsreg, wavesgpr=None, label="x"):
        if not STAMP: return
        a = self.a
        a("s_waitcnt vmcnt(0)")
        self.stamp()
        a("s_memtime s[90:91]")
        a("s_waitcnt lgkmcnt(0)")
        a("s_sub_u32 s90, s90, s92")
        if wavesgpr is not None:
            a(f"s_cmp_lg_u32 {wavesgpr}, 0")
            a(f"s_cbranch_scc1 L_st_{label}")
        a(f"s_add_u32 s96, s{wsreg}, {(128<<20) + self.k*65536}")
        a(f"s_addc_u32 s97, s{wsreg+1}, 0")
        a("s_mov_b32 s98, 65536")
        a("s_mov_b32 s99, 0x20000")
        a("s_lshl_b32 s95, s2, 7")
        a("v_mov_b32 v2, s95")
        for i in range(self.n):
            a(f"v_mov_b32 v0, s{64+2*i}")
            a(f"v_mov_b32 v1, s{65+2*i}")
            a(f"buffer_store_dwordx2 v[0:1], v2, s[96:99], 0 offen offset:{8*i}")
            a("s_waitcnt vmcnt(0)")
        a("v_mov_b32 v0, s90")
        a("v_mov_b32 v1, s94")
        a("buffer_store_dwordx2 v[0:1], v2, s[96:99], 0 offen offset:120")
        if wavesgpr is not None:
            a.label(f"L_st_{label}")
```

```python
import sys, math
from asmlib import *
import stamps
from stamps import Stamps

HF_BYTES = 2048*512*2
UF_OFF = HF_BYTES
UF_BYTES = 172*8192
F_OFF = 4 << 20
F2_REL = 64*128
F_BYTES = (64+176)*128
W_BYTES = 2048*2752
NAME = "standalone__mixer_token_mlp__prompt_kernel"
NSLOT = 20
PAIR = NSLOT*4096

class Cfg:
    LA = 6
    early = 12
    sleep = 1
    TMO = 30000
    rot2 = 1
    hpf = 1
    w1rest = 1
    ghost = 1
    utouch = 1
    nocomp = 0
    fine = 0
C = Cfg()

P_X, P_W1, P_B1, P_W2, P_B2, P_OUT, P_DBG, P_WS = 4, 6, 8, 10, 12, 14, 16, 18
S_W, S_ACT, S_BIAS, S_OUT, S_FLAG, S_DBG = 20, 24, 28, 32, 36, 40
sX, sJ, sWAVE, sCOL, sD0, sKH, sDH, sLDS, sT, sT2, sKW, sKA, sOW, sOA, sCNT, sFT, sC1, sMASK = range(44, 62)
ACC = 24; BIAS = 56; FR = 64; HR = 96
V_W2 = 10

def srd(a, s, lo, size, add=0):
    if add: a(f"s_add_u32 s{s}, s{lo}, {add}\ns_addc_u32 s{s+1}, s{lo+1}, 0")
    else: a(f"s_mov_b32 s{s}, s{lo}\ns_mov_b32 s{s+1}, s{lo+1}")
    a(f"s_mov_b32 s{s+2}, {size}\ns_mov_b32 s{s+3}, 0x20000")

class VM:
    def __init__(self): self.q = []
    def issue(self, tag): self.q.append(tag)
    def count_after(self, tags):
        last = max((i for i, t in enumerate(self.q) if t in tags), default=-1)
        return last, len(self.q) - 1 - last
    def wait_for(self, a, tags):
        last, n = self.count_after(tags)
        if last < 0: return
        a(f"s_waitcnt vmcnt({min(n,63)})")
        self.q = self.q[last+1:]

def poll(a, label, vflagoff):
    a(f"""
    s_mov_b32 s{sCNT}, 0
    v_mov_b32 v7, 0
    L_poll_{label}:
    buffer_load_dword v3, v7, s[{S_DBG}:{S_DBG+3}], 0 offen sc1
    buffer_load_dword v4, v{vflagoff}, s[{S_FLAG}:{S_FLAG+3}], 0 offen sc1
    s_add_u32 s{sCNT}, s{sCNT}, 1
    s_waitcnt vmcnt(0)
    v_or_b32 v16, 1, v4
    v_cmp_ne_u32 vcc, v3, v16
    v_cmp_ne_u32 s[{sT}:{sT+1}], v3, v4
    s_or_b64 vcc, vcc, s[{sT}:{sT+1}]
    s_cbranch_scc0 L_polled_{label}
    s_sleep {C.sleep}
    s_cmp_lt_u32 s{sCNT}, {C.TMO}
    s_cbranch_scc1 L_poll_{label}
    L_polled_{label}:
    """)

def dma_voff(a, g1, scol, vdst):
    ROWB = 2752 if g1 else 4096
    a(f"""
    v_lshrrev_b32 v4, 3, v1
    s_mov_b32 s{sT}, {ROWB}
    v_mul_lo_u32 v3, v4, s{sT}
    v_bfe_u32 v7, v1, 4, 1
    v_lshlrev_b32 v7, 2, v7
    v_and_b32 v4, 7, v1
    v_xor_b32 v4, v4, v7
    v_lshl_add_u32 v3, v4, 4, v3
    s_lshl_b32 s{sT}, s{scol}, 1
    s_mul_i32 s{sT2}, s{sWAVE}, {16*ROWB}
    s_add_u32 s{sT}, s{sT}, s{sT2}
    v_add_u32 v{vdst}, s{sT}, v3
    v_add_u32 v{vdst+1}, {8*ROWB-1024}, v{vdst}
    """)

def act_setup(a):
    a(f"""
    v_lshrrev_b32 v5, 5, v1
    v_and_b32 v6, 31, v1
    v_lshl_add_u32 v4, v5, 9, v6
    v_add_u32 v4, s{sD0}, v4
    v_lshlrev_b32 v4, 4, v4
    s_lshl_b32 s{sT}, s{sDH}, 9
    s_lshl_b32 s{sT2}, s{sKH}, 15
    s_add_u32 s{sT}, s{sT}, s{sT2}
    v_add_u32 v12, s{sT}, v4
    v_add_u32 v13, 0x4000, v12
    """)
def tr_setup(a):
    a(f"""
    v_lshrrev_b32 v5, 5, v1
    v_bfe_u32 v7, v1, 2, 2
    v_lshl_add_u32 v16, v5, 3, v7
    v_lshlrev_b32 v16, 7, v16
    v_and_b32 v17, 3, v1
    v_lshl_add_u32 v16, v17, 3, v16
    v_bfe_u32 v17, v1, 4, 1
    v_lshl_add_u32 v16, v17, 5, v16
    v_bfe_u32 v17, v1, 3, 1
    v_xor_b32 v17, s{sKH}, v17
    v_lshl_add_u32 v16, v17, 6, v16
    s_mul_i32 s{sT}, s{sKH}, {PAIR}
    v_add_u32 v18, s{sT}, v16
    v_xor_b32 v19, 64, v18
    v_add_u32 v20, 0x10000, v18
    v_add_u32 v21, 0x10000, v19
    """)

def slot_of(g1, m): return (m % NSLOT) if g1 else ((m + 14) % NSLOT)
def adv2(sk): return f"s_add_u32 s{sk}, s{sk}, 1\ns_cmp_eq_u32 s{sk}, 22\ns_cselect_b32 s{sk}, 0, s{sk}"

def w_dma(g1, m):
    slot = slot_of(g1, m)
    if g1:
        S = f"s[{S_W}:{S_W+3}]"
        return [f"s_add_u32 m0, s{sLDS}, {slot*4096}\ns_mov_b32 s{sOW}, {m*64*2752}\nbuffer_load_dwordx4 v8, {S}, s{sOW} offen lds",
                f"buffer_load_dwordx4 v9, {S}, s{sOW} offen offset:1024 lds"]
    S = f"s[{S_BIAS}:{S_BIAS+3}]"
    return [f"s_add_u32 m0, s{sLDS}, {slot*4096}\ns_lshl_b32 s{sOW}, s{sKW}, 18\nbuffer_load_dwordx4 v{V_W2}, {S}, s{sOW} offen lds",
            f"buffer_load_dwordx4 v{V_W2+1}, {S}, s{sOW} offen offset:1024 lds\n" + adv2(sKW)]
def a_ld(g1, m):
    R = C.LA + 1
    r = HR + 8*(m % R)
    S = f"s[{S_ACT}:{S_ACT+3}]"
    if g1:
        return [f"s_mov_b32 s{sOA}, {m*65536}\nbuffer_load_dwordx4 {vr(r,4)}, v12, {S}, s{sOA} offen sc1",
                f"buffer_load_dwordx4 {vr(r+4,4)}, v13, {S}, s{sOA} offen sc1"]
    return [f"s_lshl_b32 s{sOA}, s{sKA}, 16\nbuffer_load_dwordx4 {vr(r,4)}, v12, {S}, s{sOA} offen sc1",
            f"buffer_load_dwordx4 {vr(r+4,4)}, v13, {S}, s{sOA} offen sc1\n" + adv2(sKA)]

def w_reads(g1, m):
    slot = slot_of(g1, m)
    base = 18 if slot < 16 else 20
    off = (slot % 16)*4096
    out = []
    for h2 in range(2):
        for cb in range(2):
            r = FR + 16*(m&1) + 8*h2 + 4*cb
            if C.nocomp & 1: out.append(""); continue
            out.append(f"ds_read_b64_tr_b16 {vr(r,2)}, v{base+cb} offset:{off+h2*2048}\nds_read_b64_tr_b16 {vr(r+2,2)}, v{base+cb} offset:{off+h2*2048+512}")
    return out

def gemm_loop(a, g1, st, vm):
    NS = 32 if g1 else 22
    LA = C.LA; R = LA+1
    def mfma(m, h2, cb):
        if C.nocomp & 2: return ""
        w = vr(FR+16*(m&1)+8*h2+4*cb,4); h = vr(HR+8*(m%R)+4*h2,4)
        c = vr(ACC+16*cb,16)
        if g1: return f"v_mfma_f32_32x32x16_bf16 {c}, {w}, {h}, {c}"
        return f"v_mfma_f32_32x32x16_bf16 {c}, {h}, {w}, {c}"
    for m in range(LA):
        for i, s in enumerate(a_ld(g1, m)): a(s); vm.issue(('a', m, i))
    refill = {}
    bar_before = set()
    if g1:
        for g in range(3):
            bar_before.add(4*g+5)
            for i in range(4): refill[4*g+5+i] = 20+4*g+i
        bar_before.add(19)
        bar_before.add(27)
    else:
        bar_before.add(3)
        refill[3] = 20; refill[4] = 21
        bar_before.add(19)
    w2n = 0
    for m in range(NS):
        if C.fine == (1 if g1 else 2) and m % 4 == 1 and m < 30: st.stamp(wait=False, force=True)
        if m in bar_before:
            if m == 19: vm.wait_for(a, {('w', x) for x in range(20, min(NS,28))})
            if m == 27: vm.wait_for(a, {('w', x) for x in range(28, NS)})
            a("s_barrier")
        ld = []
        if m+LA < NS: ld += [(s, ('a', m+LA, i)) for i, s in enumerate(a_ld(g1, m+LA))]
        if m in refill: ld += [(s, ('w', refill[m])) for s in w_dma(g1, refill[m])]
        if g1 and m >= 27:
            while len(ld) < 4 and w2n < C.early:
                ld += [(s, ('w2', w2n)) for s in w_dma(False, w2n)]; w2n += 1
        rd = w_reads(g1, m+1) if m+1 < NS else []
        k = 0
        for h2 in range(2):
            vm.wait_for(a, {('a', m, h2)})
            for cb in range(2):
                newer = 2*(3-k) + (2*k if rd else 0)
                a(f"s_waitcnt lgkmcnt({newer})")
                a(mfma(m, h2, cb))
                if rd: a(rd[k])
                if k < len(ld): a(ld[k][0]); vm.issue(ld[k][1])
                k += 1
    while g1 and w2n < C.early:
        for s in w_dma(False, w2n): a(s); vm.issue(('w2', w2n))
        w2n += 1
    st.stamp()
    xs = 12 if g1 else 16
    a(f"""
    v_lshlrev_b32 v16, 4, v1
    s_mul_i32 s{sT}, s{sKH}, {PAIR}
    s_lshl_b32 s{sT2}, s{sDH}, 12
    s_add_u32 s{sT2}, s{sT2}, {xs*4096}
    s_add_u32 s{sT}, s{sT}, s{sT2}
    v_add_u32 v17, s{sT}, v16
    s_xor_b32 s{sT}, s{sKH}, 1
    s_mul_i32 s{sT}, s{sT}, {PAIR}
    s_add_u32 s{sT}, s{sT}, s{sT2}
    v_add_u32 v22, s{sT}, v16
    s_nop 5
    """)
    for j in range(4):
        a(f"ds_write_b128 v17, {vr(ACC+16+4*j,4)} offset:{j*1024}")
    T = HR
    if g1:
        c0 = -2.0*math.sqrt(2.0/math.pi)*math.log2(math.e)
        c1 = c0*0.044715
        a(f"""
        s_mov_b32 s{sC1}, {hex(f2u(c1))}
        v_mov_b32 v14, {hex(f2u(c0))}
        v_mov_b32 v15, {hex(f2u(c0))}
        s_lshl_b32 s{sT}, s{sKH}, 5
        s_add_u32 s{sT}, s{sT}, s{sCOL}
        s_lshl_b32 s{sT}, s{sT}, 6
        s_add_u32 s{sT}, s{sT}, s{sD0}
        s_lshl_b32 s{sT2}, s{sDH}, 5
        s_add_u32 s{sT}, s{sT}, s{sT2}
        v_lshl_add_u32 v16, v5, 9, v6
        v_add_u32 v16, s{sT}, v16
        v_lshlrev_b32 v16, 4, v16
        """)
    else:
        a(f"""
        s_lshl_b32 s{sT}, s{sKH}, 5
        s_add_u32 s{sT}, s{sT}, s{sCOL}
        v_add_u32 v16, s{sT}, v6
        v_lshlrev_b32 v16, 9, v16
        v_lshl_add_u32 v16, v5, 3, v16
        s_lshl_b32 s{sT2}, s{sDH}, 5
        s_add_u32 s{sT2}, s{sT2}, s{sD0}
        v_add_u32 v16, s{sT2}, v16
        v_lshlrev_b32 v16, 1, v16
        """)
    a("s_waitcnt lgkmcnt(0)")
    a("s_barrier")
    for j in range(4):
        a(f"ds_read_b128 {vr(ACC+16+4*j,4)}, v22 offset:{j*1024}")
    P = T+16
    for jp in range(2):
        qs = range(8*jp, 8*jp+8, 2)
        for j in (2*jp, 2*jp+1):
            a(f"s_waitcnt lgkmcnt({3-j})")
            a(f"v_pk_add_f32 {vr(ACC+4*j,2)}, {vr(ACC+4*j,2)}, {vr(ACC+16+4*j,2)}")
            a(f"v_pk_add_f32 {vr(ACC+4*j+2,2)}, {vr(ACC+4*j+2,2)}, {vr(ACC+16+4*j+2,2)}")
        if g1:
            for q in qs: a(f"v_pk_mul_f32 {vr(T+q,2)}, {vr(ACC+q,2)}, {vr(ACC+q,2)}")
            for q in qs: a(f"v_pk_fma_f32 {vr(T+q,2)}, {vr(T+q,2)}, s[{sC1}:{sC1+1}], v[14:15] op_sel_hi:[1,0,1]")
            for q in qs: a(f"v_pk_mul_f32 {vr(T+q,2)}, {vr(T+q,2)}, {vr(ACC+q,2)}")
            for q in range(8*jp, 8*jp+8): a(f"v_exp_f32 v{T+q}, v{T+q}")
            for q in qs: a(f"v_pk_add_f32 {vr(T+q,2)}, {vr(T+q,2)}, 1.0 op_sel_hi:[1,0]")
            for q in range(8*jp, 8*jp+8): a(f"v_rcp_f32 v{T+q}, v{T+q}")
            for q in qs: a(f"v_pk_mul_f32 {vr(ACC+q,2)}, {vr(T+q,2)}, {vr(ACC+q,2)}")
        for j in (2*jp, 2*jp+1):
            a(f"v_cvt_pk_bf16_f32 v{P+2*j}, v{ACC+4*j}, v{ACC+4*j+1}")
            a(f"v_cvt_pk_bf16_f32 v{P+2*j+1}, v{ACC+4*j+2}, v{ACC+4*j+3}")
        a("s_nop 1")
        a(f"v_permlane32_swap_b32 v{P+4*jp}, v{P+4*jp+2}")
        a(f"v_permlane32_swap_b32 v{P+4*jp+1}, v{P+4*jp+3}")
        if g1:
            a(f"s_mov_b32 s{sT}, {jp*2*8192}")
            a(f"buffer_store_dwordx4 {vr(P+4*jp,4)}, v16, s[{S_OUT}:{S_OUT+3}], s{sT} offen sc1")
        else:
            a(f"buffer_store_dwordx4 {vr(P+4*jp,4)}, v16, s[{S_OUT}:{S_OUT+3}], 0 offen offset:{32*jp}")

def acc_init(a, g1):
    if g1:
        for j in range(4):
            for r in range(4):
                b = BIAS+2*j+(r>>1)
                if r&1: a(f"v_and_b32 v{ACC+4*j+r}, 0xffff0000, v{b}")
                else: a(f"v_lshlrev_b32 v{ACC+4*j+r}, 16, v{b}")
    else:
        for q in range(16): a(f"v_lshlrev_b32 v{ACC+q}, 16, v{BIAS}")
def acc_zero(a):
    for i in range(16, 32): a(f"v_mov_b32 v{ACC+i}, 0")

import gen_f1
def gen_ln(a, st):
    gen_f1.gen_ln(a, st)

def g2_tile(a, scol, sd0):
    a(f"""
    s_and_b32 s{sT2}, s{sJ}, 7
    s_lshr_b32 s{sT}, s{sX}, 1
    s_lshl_b32 s{sT}, s{sT}, 3
    s_add_u32 s{scol}, s{sT}, s{sT2}
    s_lshl_b32 s{scol}, s{scol}, 6
    """)
    if sd0 is not None:
        a(f"""
        s_and_b32 s{sT}, s{sX}, 1
        s_lshl_b32 s{sT}, s{sT}, 2
        s_lshr_b32 s{sd0}, s{sJ}, 3
        s_add_u32 s{sd0}, s{sd0}, s{sT}
        s_lshl_b32 s{sd0}, s{sd0}, 6
        """)
def w2_setup(a):
    g2_tile(a, sCNT, None)
    srd(a, S_BIAS, P_W2, W_BYTES)
    dma_voff(a, False, sCNT, V_W2)
    a(f"s_and_b32 s{sKW}, s{sX}, 1\ns_mul_i32 s{sKW}, s{sKW}, {11 if C.rot2 else 0}")

def main(out, opts):
    for o in opts:
        k, v = o.split('=')
        if k == 'stamp': stamps.STAMP = bool(int(v)); continue
        if k == 'cyc': stamps.CYC = bool(int(v)); continue
        cur = getattr(C, k)
        setattr(C, k, int(v) if isinstance(cur, int) else v.replace('_', ' '))
    if C.fine == 1: stamps.ONLY = {3, 4}
    if C.fine == 2: stamps.ONLY = {12, 13}
    a = Asm()
    a.raw(HEADER.rstrip('\n'))
    a.raw(f"; @launch grid=(256,1,1) block=(256,1,1) lds={2*PAIR}")
    a.raw('.amdgcn_target "amdgcn-amd-amdhsa--gfx950"')
    a.raw(".text")
    kernel_begin(a, NAME)
    a("s_cmp_ge_u32 s2, 256\ns_cbranch_scc1 L_done")
    st = Stamps(a, 0)
    st.stamp()
    a(f"""
    s_load_dwordx16 s[4:19], s[0:1], 0
    s_memrealtime s[62:63]
    s_and_b32 s{sX}, s2, 7
    s_lshr_b32 s{sJ}, s2, 3
    v_and_b32 v1, 63, v0
    v_lshrrev_b32 v2, 6, v0
    s_nop 0
    v_readfirstlane_b32 s{sWAVE}, v2
    s_nop 3
    s_lshr_b32 s{sKH}, s{sWAVE}, 1
    s_and_b32 s{sDH}, s{sWAVE}, 1
    s_cmp_lt_u32 s{sJ}, 10
    s_cbranch_scc1 L_helper
    """)
    a(f"""
    s_mul_i32 s{sLDS}, s{sKH}, {PAIR}
    s_lshl_b32 s{sT}, s{sDH}, 11
    s_add_u32 s{sLDS}, s{sLDS}, s{sT}
    s_lshr_b32 s{sT}, s{sX}, 1
    s_mul_i32 s{sT}, s{sT}, 22
    s_add_u32 s{sT}, s{sT}, s{sJ}
    s_sub_u32 s{sT}, s{sT}, 10
    s_lshr_b32 s{sFT}, s{sT}, 2
    s_and_b32 s{sKA}, s{sT}, 3
    s_and_b32 s{sT}, s{sX}, 1
    s_lshl_b32 s{sT}, s{sT}, 2
    s_add_u32 s{sD0}, s{sKA}, s{sT}
    s_lshl_b32 s{sD0}, s{sD0}, 6
    s_lshl_b32 s{sCOL}, s{sFT}, 6
    """)
    dma_voff(a, True, sCOL, 8)
    a("s_waitcnt lgkmcnt(0)")
    srd(a, S_W, P_W1, W_BYTES)
    SW = f"s[{S_W}:{S_W+3}]"
    for b in range(4):
        a(f"""
        s_add_u32 s{sT}, s{sKA}, {b}
        s_and_b32 s{sT}, s{sT}, 3
        s_mul_i32 s{sOW}, s{sT}, {64*2752}
        s_lshl_b32 s{sT}, s{sT}, 12
        s_add_u32 s{sT}, s{sT}, s{sLDS}
        """)
        for q in range(5):
            a(f"s_add_u32 m0, s{sT}, {q*16384}")
            if q: a(f"s_add_u32 s{sOW}, s{sOW}, {4*64*2752}")
            else: a("s_nop 0")
            a(f"buffer_load_dwordx4 v8, {SW}, s{sOW} offen lds")
            a(f"buffer_load_dwordx4 v9, {SW}, s{sOW} offen offset:1024 lds")
    st.stamp()
    srd(a, S_DBG, P_DBG, 256)
    srd(a, S_FLAG, P_WS, F_BYTES, F_OFF)
    act_setup(a)
    tr_setup(a)
    srd(a, S_ACT, P_WS, HF_BYTES)
    srd(a, S_BIAS, P_B1, 2752)
    srd(a, S_OUT, P_WS, UF_BYTES, UF_OFF)
    a(f"""
    s_lshl_b32 s{sT}, s{sKH}, 5
    s_add_u32 s{sT}, s{sT}, s{sCOL}
    s_lshl_b32 s{sT}, s{sT}, 1
    v_lshlrev_b32 v16, 3, v5
    v_add_u32 v16, s{sT}, v16
    """)
    for j in range(4):
        a(f"buffer_load_dwordx2 {vr(BIAS+2*j,2)}, v16, s[{S_BIAS}:{S_BIAS+3}], 0 offen offset:{16*j}")
    acc_zero(a)
    a(f"""
    v_lshlrev_b32 v23, 1, v6
    v_add_u32 v23, s{sKH}, v23
    v_lshlrev_b32 v23, 7, v23
    s_waitcnt vmcnt(0)
    s_barrier
    """)
    for s in w_reads(True, 0): a(s)
    acc_init(a, True)
    w2_setup(a)
    st.stamp()
    poll(a, "g1", 23)
    st.stamp()
    a("v_mov_b32 v2, v3")
    vm = VM()
    gemm_loop(a, True, st, vm)
    st.stamp()
    a(f"""
    s_lshr_b32 s{sT}, s{sD0}, 6
    s_mul_i32 s{sT}, s{sT}, 22
    s_add_u32 s{sT}, s{sT}, s{sFT}
    s_lshl_b32 s{sT}, s{sT}, 7
    s_add_u32 s{sT}, s{sT}, {F2_REL}
    v_mov_b32 v23, s{sT}
    s_waitcnt vmcnt(0)
    s_barrier
    s_cmp_lg_u32 s{sWAVE}, 0
    s_cbranch_scc1 L_g2
    buffer_store_dword v2, v23, s[{S_FLAG}:{S_FLAG+3}], 0 offen sc1
    s_branch L_g2
    """)
    a.label("L_helper")
    n_save = st.n
    st.n = 1
    a(f"""
    s_mul_i32 s{sLDS}, s{sWAVE}, 16384
    s_waitcnt lgkmcnt(0)
    """)
    srd(a, S_DBG, P_DBG, 256)
    srd(a, S_FLAG, P_WS, F_BYTES, F_OFF)
    a(f"""
    s_cmp_ge_u32 s{sJ}, 8
    s_cbranch_scc1 L_spare
    s_mov_b32 s{sFT}, s2
    """)
    gen_ln(a, st)
    gen_f1.nonce_get(a, "ln")
    st.stamp()
    a(f"""
    s_barrier
    s_cmp_lg_u32 s{sWAVE}, 0
    s_cbranch_scc1 L_h2
    s_lshl_b32 s{sT}, s{sFT}, 7
    v_mov_b32 v23, s{sT}
    buffer_store_dword v3, v23, s[{S_FLAG}:{S_FLAG+3}], 0 offen sc1
    s_branch L_h2
    L_spare:
    s_xor_b32 s{sT}, s2, 64
    s_or_b32 s{sT}, s{sT}, s{sWAVE}
    s_cmp_lg_u32 s{sT}, 0
    s_cbranch_scc1 L_nononce
    s_or_b32 s62, s62, 1
    v_mov_b32 v3, s62
    v_mov_b32 v7, 0
    buffer_store_dword v3, v7, s[{S_DBG}:{S_DBG+3}], 0 offen sc1
    L_nononce:
    """)
    def xcd_col(a):
        a(f"""
        s_lshr_b32 s{sT}, s{sX}, 1
        s_mul_i32 s{sT}, s{sT}, 22
        s_lshr_b32 s{sT}, s{sT}, 2
        s_lshl_b32 s{sCOL}, s{sT}, 7
        """)
    srd(a, S_W, P_W1, W_BYTES)
    if C.ghost:
        a(f"""
        s_lshr_b32 s{sT}, s{sX}, 2
        s_mul_i32 s{sT}, s{sT}, 11
        s_add_u32 s{sT}, s{sT}, 5
        s_lshl_b32 s{sCOL}, s{sT}, 7
        s_bfe_u32 s{sT}, s{sX}, 0x10001
        s_xor_b32 s{sT}, s{sT}, 1
        s_lshl_b32 s{sT}, s{sT}, 1
        s_add_u32 s{sT}, s{sT}, s{sJ}
        s_sub_u32 s{sT}, s{sT}, 8
        s_lshl_b32 s{sT2}, s{sWAVE}, 2
        s_add_u32 s{sT2}, s{sT2}, s{sT}
        s_mul_i32 s{sOW}, s{sT2}, {64*2752}
        s_add_u32 s{sOW}, s{sOW}, s{sCOL}
        s_add_u32 s{sT}, s{sT}, 16
        s_mul_i32 s{sOA}, s{sT}, {64*2752}
        s_add_u32 s{sOA}, s{sOA}, s{sCOL}
        s_mov_b32 s{sT}, 2752
        v_mul_lo_u32 v3, v1, s{sT}
        buffer_load_dword v24, v3, {SW}, s{sOW} offen
        buffer_load_dword v25, v3, {SW}, s{sOW} offen offset:124
        buffer_load_dword v26, v3, {SW}, s{sOA} offen
        buffer_load_dword v27, v3, {SW}, s{sOA} offen offset:124
        """)
    a.label("L_h2")
    srd(a, S_W, P_W1, W_BYTES)
    if C.w1rest:
        xcd_col(a)
        a(f"""
        s_mov_b32 s{sT}, 2752
        v_mul_lo_u32 v3, v1, s{sT}
        s_lshl_b32 s{sT}, s{sJ}, 2
        s_add_u32 s{sT}, s{sT}, s{sWAVE}       ; 0..39
        s_cmp_ge_u32 s{sJ}, 8
        s_cselect_b32 s{sKA}, -32, 48
        s_cselect_b32 s{sKW}, 8, 32            ; stride
        s_cselect_b32 s{sCNT}, 48, 84          ; end
        s_add_u32 s{sKA}, s{sKA}, s{sT}        ; unit
        L_w1r:
        s_mul_i32 s{sT}, s{sKA}, 37
        s_lshr_b32 s{sT}, s{sT}, 8
        s_mul_i32 s{sT2}, s{sT}, 7
        s_sub_u32 s{sT2}, s{sKA}, s{sT2}
        s_lshl_b32 s{sT2}, s{sT2}, 7
        s_add_u32 s{sT}, s{sT}, 20
        s_mul_i32 s{sOW}, s{sT}, {64*2752}
        s_add_u32 s{sOW}, s{sOW}, s{sT2}
        s_add_u32 s{sOW}, s{sOW}, s{sCOL}
        buffer_load_dword v24, v3, {SW}, s{sOW} offen
        s_add_u32 s{sKA}, s{sKA}, s{sKW}
        s_cmp_lt_u32 s{sKA}, s{sCNT}
        s_cbranch_scc1 L_w1r
        """)
    if C.hpf:
        srd(a, S_ACT, P_WS, HF_BYTES)
        a(f"""
        v_lshlrev_b32 v23, 7, v1
        """)
        poll(a, "h", 23)
        a(f"""
        v_and_b32 v3, 31, v1
        v_lshlrev_b32 v3, 7, v3
        v_lshrrev_b32 v4, 5, v1
        v_lshl_add_u32 v3, v4, 13, v3
        s_lshl_b32 s{sT}, s{sJ}, 2
        s_add_u32 s{sT}, s{sT}, s{sWAVE}
        s_lshl_b32 s{sT}, s{sT}, 14
        s_and_b32 s{sT2}, s{sX}, 1
        s_lshl_b32 s{sT2}, s{sT2}, 12
        s_add_u32 s{sOA}, s{sT}, s{sT2}
        """)
        for i in range(4):
            a(f"buffer_load_dword v{24+i}, v3, s[{S_ACT}:{S_ACT+3}], s{sOA} offen sc1")
            a(f"s_add_u32 s{sOA}, s{sOA}, {40*16384}")
    a(f"""
    s_barrier
    s_mul_i32 s{sLDS}, s{sKH}, {PAIR}
    s_lshl_b32 s{sT}, s{sDH}, 11
    s_add_u32 s{sLDS}, s{sLDS}, s{sT}
    """)
    st.stamp()
    w2_setup(a)
    tr_setup(a)
    for m in range(C.early):
        for s in w_dma(False, m): a(s)
    st.n = n_save
    a.label("L_g2")
    st.stamp()
    for m in range(C.early, NSLOT):
        for s in w_dma(False, m): a(s)
    g2_tile(a, sCOL, sD0)
    act_setup(a)
    srd(a, S_ACT, P_WS, UF_BYTES, UF_OFF)
    srd(a, S_W, P_B2, 4096)
    srd(a, S_OUT, P_OUT, HF_BYTES)
    a(f"""
    s_and_b32 s{sKA}, s{sX}, 1
    s_mul_i32 s{sKA}, s{sKA}, {11 if C.rot2 else 0}
    s_lshl_b32 s{sT}, s{sKH}, 5
    s_add_u32 s{sT}, s{sT}, s{sCOL}
    v_add_u32 v16, s{sT}, v6
    v_lshlrev_b32 v16, 1, v16
    buffer_load_ushort v{BIAS}, v16, s[{S_W}:{S_W+3}], 0 offen
    """)
    acc_zero(a)
    a(f"""
    v_min_u32 v23, 21, v1
    s_lshr_b32 s{sT}, s{sD0}, 6
    s_mul_i32 s{sT}, s{sT}, 22
    s_add_u32 s{sT}, s{sT}, 64
    v_add_u32 v23, s{sT}, v23
    v_lshlrev_b32 v23, 7, v23
    """)
    if C.utouch:
        a(f"""
        v_lshrrev_b32 v14, 3, v1
        v_lshlrev_b32 v14, 13, v14
        v_and_b32 v15, 7, v1
        v_lshl_add_u32 v14, v15, 7, v14
        s_and_b32 s{sT}, s{sJ}, 7
        s_lshl_b32 s{sT2}, s{sWAVE}, 3
        s_add_u32 s{sT}, s{sT}, s{sT2}
        s_lshl_b32 s{sT}, s{sT}, 16
        s_lshl_b32 s{sT2}, s{sD0}, 4
        s_add_u32 s{sT}, s{sT}, s{sT2}
        v_add_u32 v14, s{sT}, v14
        """)
    a("s_waitcnt vmcnt(0)\ns_barrier")
    for s in w_reads(False, 0): a(s)
    acc_init(a, False)
    st.stamp()
    poll(a, "g2", 23)
    st.stamp()
    vm = VM()
    if C.utouch:
        a(f"buffer_load_dword v15, v14, s[{S_ACT}:{S_ACT+3}], 0 offen sc1"); vm.issue('t')
    gemm_loop(a, False, st, vm)
    st.stamp()
    st.flush(P_WS, f"s{sWAVE}", "f")
    a.label("L_done")
    a("s_endpgm")
    a.raw('.section .rodata,"a"')
    a.raw(kernel_desc(NAME, max(HR + 8*(C.LA+1), 128), 100))
    open(out, 'w').write(a.text())

if __name__ == "__main__":
    main(sys.argv[1], sys.argv[2:])
```

```python
import sys, math
from asmlib import *
import stamps
from stamps import Stamps

HF_BYTES = 2048*512*2
UF_OFF = HF_BYTES
UF_BYTES = 172*8192
F_OFF = 4 << 20
F2_REL = 64*128
F_BYTES = (64+176)*128
W_BYTES = 2048*2752
NAME = "standalone__mixer_token_mlp__prompt_kernel"
NSLOT = 20
PAIR = NSLOT*4096

class Cfg:
    LA = 6
    early = 12
    sleep = 1
    TMO = 30000
    rot2 = 1
    hpf = 1
    w1rest = 1
    ghost = 1
    utouch = 1
    nocomp = 0
    fine = 0
    blk8 = 0
    cpf = 0
C = Cfg()

P_X, P_W1, P_B1, P_W2, P_B2, P_OUT, P_DBG, P_WS = 4, 6, 8, 10, 12, 14, 16, 18
S_W, S_ACT, S_BIAS, S_OUT, S_FLAG, S_DBG = 20, 24, 28, 32, 36, 40
sX, sJ, sWAVE, sCOL, sD0, sKH, sDH, sLDS, sT, sT2, sKW, sKA, sOW, sOA, sCNT, sFT, sC1, sMASK = range(44, 62)
ACC = 24; BIAS = 56; FR = 64; HR = 96
V_W2 = 10

def srd(a, s, lo, size, add=0):
    if add: a(f"s_add_u32 s{s}, s{lo}, {add}\ns_addc_u32 s{s+1}, s{lo+1}, 0")
    else: a(f"s_mov_b32 s{s}, s{lo}\ns_mov_b32 s{s+1}, s{lo+1}")
    a(f"s_mov_b32 s{s+2}, {size}\ns_mov_b32 s{s+3}, 0x20000")

class VM:
    def __init__(self): self.q = []
    def issue(self, tag): self.q.append(tag)
    def count_after(self, tags):
        last = max((i for i, t in enumerate(self.q) if t in tags), default=-1)
        return last, len(self.q) - 1 - last
    def wait_for(self, a, tags):
        last, n = self.count_after(tags)
        if last < 0: return
        a(f"s_waitcnt vmcnt({min(n,63)})")
        self.q = self.q[last+1:]

def poll(a, label, vflagoff):
    a(f"""
    s_mov_b32 s{sCNT}, 0
    v_mov_b32 v7, 0
    L_poll_{label}:
    buffer_load_dword v3, v7, s[{S_DBG}:{S_DBG+3}], 0 offen sc1
    buffer_load_dword v4, v{vflagoff}, s[{S_FLAG}:{S_FLAG+3}], 0 offen sc1
    s_add_u32 s{sCNT}, s{sCNT}, 1
    s_waitcnt vmcnt(0)
    v_or_b32 v16, 1, v4
    v_cmp_ne_u32 vcc, v3, v16
    v_cmp_ne_u32 s[{sT}:{sT+1}], v3, v4
    s_or_b64 vcc, vcc, s[{sT}:{sT+1}]
    s_cbranch_scc0 L_polled_{label}
    s_sleep {C.sleep}
    s_cmp_lt_u32 s{sCNT}, {C.TMO}
    s_cbranch_scc1 L_poll_{label}
    L_polled_{label}:
    """)

def dma_voff(a, g1, scol, vdst):
    ROWB = 2752 if g1 else 4096
    a(f"""
    v_lshrrev_b32 v4, 3, v1
    s_mov_b32 s{sT}, {ROWB}
    v_mul_lo_u32 v3, v4, s{sT}
    v_bfe_u32 v7, v1, 4, 1
    v_lshlrev_b32 v7, 2, v7
    v_and_b32 v4, 7, v1
    v_xor_b32 v4, v4, v7
    v_lshl_add_u32 v3, v4, 4, v3
    s_lshl_b32 s{sT}, s{scol}, 1
    s_mul_i32 s{sT2}, s{sWAVE}, {16*ROWB}
    s_add_u32 s{sT}, s{sT}, s{sT2}
    v_add_u32 v{vdst}, s{sT}, v3
    v_add_u32 v{vdst+1}, {8*ROWB-1024}, v{vdst}
    """)

def act_setup(a):
    a(f"""
    v_lshrrev_b32 v5, 5, v1
    v_and_b32 v6, 31, v1
    v_lshl_add_u32 v4, v5, 9, v6
    v_add_u32 v4, s{sD0}, v4
    v_lshlrev_b32 v4, 4, v4
    s_lshl_b32 s{sT}, s{sDH}, 9
    s_lshl_b32 s{sT2}, s{sKH}, 15
    s_add_u32 s{sT}, s{sT}, s{sT2}
    v_add_u32 v12, s{sT}, v4
    v_add_u32 v13, 0x4000, v12
    """)
def tr_setup(a):
    a(f"""
    v_lshrrev_b32 v5, 5, v1
    v_bfe_u32 v7, v1, 2, 2
    v_lshl_add_u32 v16, v5, 3, v7
    v_lshlrev_b32 v16, 7, v16
    v_and_b32 v17, 3, v1
    v_lshl_add_u32 v16, v17, 3, v16
    v_bfe_u32 v17, v1, 4, 1
    v_lshl_add_u32 v16, v17, 5, v16
    v_bfe_u32 v17, v1, 3, 1
    v_xor_b32 v17, s{sKH}, v17
    v_lshl_add_u32 v16, v17, 6, v16
    s_mul_i32 s{sT}, s{sKH}, {PAIR}
    v_add_u32 v18, s{sT}, v16
    v_xor_b32 v19, 64, v18
    v_add_u32 v20, 0x10000, v18
    v_add_u32 v21, 0x10000, v19
    """)

def slot_of(g1, m): return (m % NSLOT) if g1 else ((m + 14) % NSLOT)
def adv2(sk): return f"s_add_u32 s{sk}, s{sk}, 1\ns_cmp_eq_u32 s{sk}, 22\ns_cselect_b32 s{sk}, 0, s{sk}"

def w_dma(g1, m):
    slot = slot_of(g1, m)
    if g1:
        S = f"s[{S_W}:{S_W+3}]"
        return [f"s_add_u32 m0, s{sLDS}, {slot*4096}\ns_mov_b32 s{sOW}, {m*64*2752}\nbuffer_load_dwordx4 v8, {S}, s{sOW} offen lds",
                f"buffer_load_dwordx4 v9, {S}, s{sOW} offen offset:1024 lds"]
    S = f"s[{S_BIAS}:{S_BIAS+3}]"
    return [f"s_add_u32 m0, s{sLDS}, {slot*4096}\ns_lshl_b32 s{sOW}, s{sKW}, 18\nbuffer_load_dwordx4 v{V_W2}, {S}, s{sOW} offen lds",
            f"buffer_load_dwordx4 v{V_W2+1}, {S}, s{sOW} offen offset:1024 lds\n" + adv2(sKW)]
def a_ld(g1, m):
    R = C.LA + 1
    r = HR + 8*(m % R)
    S = f"s[{S_ACT}:{S_ACT+3}]"
    if g1:
        return [f"s_mov_b32 s{sOA}, {m*65536}\nbuffer_load_dwordx4 {vr(r,4)}, v12, {S}, s{sOA} offen sc1",
                f"buffer_load_dwordx4 {vr(r+4,4)}, v13, {S}, s{sOA} offen sc1"]
    return [f"s_lshl_b32 s{sOA}, s{sKA}, 16\nbuffer_load_dwordx4 {vr(r,4)}, v12, {S}, s{sOA} offen sc1",
            f"buffer_load_dwordx4 {vr(r+4,4)}, v13, {S}, s{sOA} offen sc1\n" + adv2(sKA)]

def w_reads(g1, m):
    slot = slot_of(g1, m)
    base = 18 if slot < 16 else 20
    off = (slot % 16)*4096
    out = []
    for h2 in range(2):
        for cb in range(2):
            r = FR + 16*(m&1) + 8*h2 + 4*cb
            if C.nocomp & 1: out.append(""); continue
            out.append(f"ds_read_b64_tr_b16 {vr(r,2)}, v{base+cb} offset:{off+h2*2048}\nds_read_b64_tr_b16 {vr(r+2,2)}, v{base+cb} offset:{off+h2*2048+512}")
    return out

def gemm_loop(a, g1, st, vm):
    NS = 32 if g1 else 22
    LA = C.LA; R = LA+1
    def mfma(m, h2, cb):
        if C.nocomp & 2: return ""
        w = vr(FR+16*(m&1)+8*h2+4*cb,4); h = vr(HR+8*(m%R)+4*h2,4)
        c = vr(ACC+16*cb,16)
        if g1: return f"v_mfma_f32_32x32x16_bf16 {c}, {w}, {h}, {c}"
        return f"v_mfma_f32_32x32x16_bf16 {c}, {h}, {w}, {c}"
    for m in range(LA):
        for i, s in enumerate(a_ld(g1, m)): a(s); vm.issue(('a', m, i))
    refill = {}
    bar_before = set()
    if g1:
        for g in range(3):
            bar_before.add(4*g+5)
            for i in range(4): refill[4*g+5+i] = 20+4*g+i
        bar_before.add(19)
        bar_before.add(27)
    else:
        bar_before.add(3)
        refill[3] = 20; refill[4] = 21
        bar_before.add(19)
    w2n = 0
    for m in range(NS):
        if C.fine == (1 if g1 else 2) and m % 4 == 1 and m < 30: st.stamp(wait=False, force=True)
        if m in bar_before:
            if m == 19: vm.wait_for(a, {('w', x) for x in range(20, min(NS,28))})
            if m == 27: vm.wait_for(a, {('w', x) for x in range(28, NS)})
            a("s_barrier")
        ld = []
        if m+LA < NS: ld += [(s, ('a', m+LA, i)) for i, s in enumerate(a_ld(g1, m+LA))]
        if m in refill: ld += [(s, ('w', refill[m])) for s in w_dma(g1, refill[m])]
        if g1 and m >= 27:
            while len(ld) < 4 and w2n < C.early:
                ld += [(s, ('w2', w2n)) for s in w_dma(False, w2n)]; w2n += 1
        rd = w_reads(g1, m+1) if m+1 < NS else []
        k = 0
        for h2 in range(2):
            vm.wait_for(a, {('a', m, h2)})
            for cb in range(2):
                newer = 2*(3-k) + (2*k if rd else 0)
                a(f"s_waitcnt lgkmcnt({newer})")
                a(mfma(m, h2, cb))
                if rd: a(rd[k])
                if k < len(ld): a(ld[k][0]); vm.issue(ld[k][1])
                k += 1
    while g1 and w2n < C.early:
        for s in w_dma(False, w2n): a(s); vm.issue(('w2', w2n))
        w2n += 1
    st.stamp()
    xs = 12 if g1 else 16
    a(f"""
    v_lshlrev_b32 v16, 4, v1
    s_mul_i32 s{sT}, s{sKH}, {PAIR}
    s_lshl_b32 s{sT2}, s{sDH}, 12
    s_add_u32 s{sT2}, s{sT2}, {xs*4096}
    s_add_u32 s{sT}, s{sT}, s{sT2}
    v_add_u32 v17, s{sT}, v16
    s_xor_b32 s{sT}, s{sKH}, 1
    s_mul_i32 s{sT}, s{sT}, {PAIR}
    s_add_u32 s{sT}, s{sT}, s{sT2}
    v_add_u32 v22, s{sT}, v16
    s_nop 5
    """)
    for j in range(4):
        a(f"ds_write_b128 v17, {vr(ACC+16+4*j,4)} offset:{j*1024}")
    T = HR
    if g1:
        c0 = -2.0*math.sqrt(2.0/math.pi)*math.log2(math.e)
        c1 = c0*0.044715
        a(f"""
        s_mov_b32 s{sC1}, {hex(f2u(c1))}
        v_mov_b32 v14, {hex(f2u(c0))}
        v_mov_b32 v15, {hex(f2u(c0))}
        s_lshl_b32 s{sT}, s{sKH}, 5
        s_add_u32 s{sT}, s{sT}, s{sCOL}
        s_lshl_b32 s{sT}, s{sT}, 6
        s_add_u32 s{sT}, s{sT}, s{sD0}
        s_lshl_b32 s{sT2}, s{sDH}, 5
        s_add_u32 s{sT}, s{sT}, s{sT2}
        v_lshl_add_u32 v16, v5, 9, v6
        v_add_u32 v16, s{sT}, v16
        v_lshlrev_b32 v16, 4, v16
        """)
    else:
        a(f"""
        s_lshl_b32 s{sT}, s{sKH}, 5
        s_add_u32 s{sT}, s{sT}, s{sCOL}
        v_add_u32 v16, s{sT}, v6
        v_lshlrev_b32 v16, 9, v16
        v_lshl_add_u32 v16, v5, 3, v16
        s_lshl_b32 s{sT2}, s{sDH}, 5
        s_add_u32 s{sT2}, s{sT2}, s{sD0}
        v_add_u32 v16, s{sT2}, v16
        v_lshlrev_b32 v16, 1, v16
        """)
    a("s_waitcnt lgkmcnt(0)")
    a("s_barrier")
    for j in range(4):
        a(f"ds_read_b128 {vr(ACC+16+4*j,4)}, v22 offset:{j*1024}")
    P = T+16
    for jp in range(2):
        qs = range(8*jp, 8*jp+8, 2)
        for j in (2*jp, 2*jp+1):
            a(f"s_waitcnt lgkmcnt({3-j})")
            a(f"v_pk_add_f32 {vr(ACC+4*j,2)}, {vr(ACC+4*j,2)}, {vr(ACC+16+4*j,2)}")
            a(f"v_pk_add_f32 {vr(ACC+4*j+2,2)}, {vr(ACC+4*j+2,2)}, {vr(ACC+16+4*j+2,2)}")
        if g1:
            for q in qs: a(f"v_pk_mul_f32 {vr(T+q,2)}, {vr(ACC+q,2)}, {vr(ACC+q,2)}")
            for q in qs: a(f"v_pk_fma_f32 {vr(T+q,2)}, {vr(T+q,2)}, s[{sC1}:{sC1+1}], v[14:15] op_sel_hi:[1,0,1]")
            for q in qs: a(f"v_pk_mul_f32 {vr(T+q,2)}, {vr(T+q,2)}, {vr(ACC+q,2)}")
            for q in range(8*jp, 8*jp+8): a(f"v_exp_f32 v{T+q}, v{T+q}")
            for q in qs: a(f"v_pk_add_f32 {vr(T+q,2)}, {vr(T+q,2)}, 1.0 op_sel_hi:[1,0]")
            for q in range(8*jp, 8*jp+8): a(f"v_rcp_f32 v{T+q}, v{T+q}")
            for q in qs: a(f"v_pk_mul_f32 {vr(ACC+q,2)}, {vr(T+q,2)}, {vr(ACC+q,2)}")
        for j in (2*jp, 2*jp+1):
            a(f"v_cvt_pk_bf16_f32 v{P+2*j}, v{ACC+4*j}, v{ACC+4*j+1}")
            a(f"v_cvt_pk_bf16_f32 v{P+2*j+1}, v{ACC+4*j+2}, v{ACC+4*j+3}")
        a("s_nop 1")
        a(f"v_permlane32_swap_b32 v{P+4*jp}, v{P+4*jp+2}")
        a(f"v_permlane32_swap_b32 v{P+4*jp+1}, v{P+4*jp+3}")
        if g1:
            a(f"s_mov_b32 s{sT}, {jp*2*8192}")
            a(f"buffer_store_dwordx4 {vr(P+4*jp,4)}, v16, s[{S_OUT}:{S_OUT+3}], s{sT} offen sc1")
        else:
            a(f"buffer_store_dwordx4 {vr(P+4*jp,4)}, v16, s[{S_OUT}:{S_OUT+3}], 0 offen offset:{32*jp}")

def acc_init(a, g1):
    if g1:
        for j in range(4):
            for r in range(4):
                b = BIAS+2*j+(r>>1)
                if r&1: a(f"v_and_b32 v{ACC+4*j+r}, 0xffff0000, v{b}")
                else: a(f"v_lshlrev_b32 v{ACC+4*j+r}, 16, v{b}")
    else:
        for q in range(16): a(f"v_lshlrev_b32 v{ACC+q}, 16, v{BIAS}")
def acc_zero(a):
    for i in range(16, 32): a(f"v_mov_b32 v{ACC+i}, 0")

import gen_f1
def gen_ln(a, st):
    gen_f1.gen_ln(a, st)

def g2_tile(a, scol, sd0):
    a(f"""
    s_and_b32 s{sT2}, s{sJ}, 7
    s_lshr_b32 s{sT}, s{sX}, 1
    s_lshl_b32 s{sT}, s{sT}, 3
    s_add_u32 s{scol}, s{sT}, s{sT2}
    s_lshl_b32 s{scol}, s{scol}, 6
    """)
    if sd0 is not None:
        a(f"""
        s_and_b32 s{sT}, s{sX}, 1
        s_lshl_b32 s{sT}, s{sT}, 2
        s_lshr_b32 s{sd0}, s{sJ}, 3
        s_add_u32 s{sd0}, s{sd0}, s{sT}
        s_lshl_b32 s{sd0}, s{sd0}, 6
        """)
def w2_setup(a):
    g2_tile(a, sCNT, None)
    srd(a, S_BIAS, P_W2, W_BYTES)
    dma_voff(a, False, sCNT, V_W2)
    a(f"s_and_b32 s{sKW}, s{sX}, 1\ns_mul_i32 s{sKW}, s{sKW}, {11 if C.rot2 else 0}")

def main(out, opts):
    for o in opts:
        k, v = o.split('=')
        if k == 'stamp': stamps.STAMP = bool(int(v)); continue
        if k == 'cyc': stamps.CYC = bool(int(v)); continue
        cur = getattr(C, k)
        setattr(C, k, int(v) if isinstance(cur, int) else v.replace('_', ' '))
    if C.fine == 1: stamps.ONLY = {3, 4}
    if C.fine == 2: stamps.ONLY = {12, 13}
    a = Asm()
    a.raw(HEADER.rstrip('\n'))
    a.raw(f"; @launch grid=(256,1,1) block=({512 if C.blk8 else 256},1,1) lds={2*PAIR}")
    a.raw('.amdgcn_target "amdgcn-amd-amdhsa--gfx950"')
    a.raw(".text")
    kernel_begin(a, NAME)
    a("s_cmp_ge_u32 s2, 256\ns_cbranch_scc1 L_done")
    st = Stamps(a, 0)
    st.stamp()
    a(f"""
    s_load_dwordx16 s[4:19], s[0:1], 0
    s_memrealtime s[62:63]
    s_and_b32 s{sX}, s2, 7
    s_lshr_b32 s{sJ}, s2, 3
    v_and_b32 v1, 63, v0
    v_lshrrev_b32 v2, 6, v0
    s_nop 0
    v_readfirstlane_b32 s{sWAVE}, v2
    s_nop 3
    s_cmp_ge_u32 s{sWAVE}, 4
    s_cbranch_scc1 L_done
    s_lshr_b32 s{sKH}, s{sWAVE}, 1
    s_and_b32 s{sDH}, s{sWAVE}, 1
    s_cmp_lt_u32 s{sJ}, 10
    s_cbranch_scc1 L_helper
    """)
    a(f"""
    s_mul_i32 s{sLDS}, s{sKH}, {PAIR}
    s_lshl_b32 s{sT}, s{sDH}, 11
    s_add_u32 s{sLDS}, s{sLDS}, s{sT}
    s_lshr_b32 s{sT}, s{sX}, 1
    s_mul_i32 s{sT}, s{sT}, 22
    s_add_u32 s{sT}, s{sT}, s{sJ}
    s_sub_u32 s{sT}, s{sT}, 10
    s_lshr_b32 s{sFT}, s{sT}, 2
    s_and_b32 s{sKA}, s{sT}, 3
    s_and_b32 s{sT}, s{sX}, 1
    s_lshl_b32 s{sT}, s{sT}, 2
    s_add_u32 s{sD0}, s{sKA}, s{sT}
    s_lshl_b32 s{sD0}, s{sD0}, 6
    s_lshl_b32 s{sCOL}, s{sFT}, 6
    """)
    dma_voff(a, True, sCOL, 8)
    a("s_waitcnt lgkmcnt(0)")
    srd(a, S_W, P_W1, W_BYTES)
    SW = f"s[{S_W}:{S_W+3}]"
    for b in range(4):
        a(f"""
        s_add_u32 s{sT}, s{sKA}, {b}
        s_and_b32 s{sT}, s{sT}, 3
        s_mul_i32 s{sOW}, s{sT}, {64*2752}
        s_lshl_b32 s{sT}, s{sT}, 12
        s_add_u32 s{sT}, s{sT}, s{sLDS}
        """)
        for q in range(5):
            a(f"s_add_u32 m0, s{sT}, {q*16384}")
            if q: a(f"s_add_u32 s{sOW}, s{sOW}, {4*64*2752}")
            else: a("s_nop 0")
            a(f"buffer_load_dwordx4 v8, {SW}, s{sOW} offen lds")
            a(f"buffer_load_dwordx4 v9, {SW}, s{sOW} offen offset:1024 lds")
    st.stamp()
    srd(a, S_DBG, P_DBG, 256)
    srd(a, S_FLAG, P_WS, F_BYTES, F_OFF)
    act_setup(a)
    tr_setup(a)
    srd(a, S_ACT, P_WS, HF_BYTES)
    srd(a, S_BIAS, P_B1, 2752)
    srd(a, S_OUT, P_WS, UF_BYTES, UF_OFF)
    a(f"""
    s_lshl_b32 s{sT}, s{sKH}, 5
    s_add_u32 s{sT}, s{sT}, s{sCOL}
    s_lshl_b32 s{sT}, s{sT}, 1
    v_lshlrev_b32 v16, 3, v5
    v_add_u32 v16, s{sT}, v16
    """)
    for j in range(4):
        a(f"buffer_load_dwordx2 {vr(BIAS+2*j,2)}, v16, s[{S_BIAS}:{S_BIAS+3}], 0 offen offset:{16*j}")
    acc_zero(a)
    a(f"""
    v_lshlrev_b32 v23, 1, v6
    v_add_u32 v23, s{sKH}, v23
    v_lshlrev_b32 v23, 7, v23
    s_waitcnt vmcnt(0)
    s_barrier
    """)
    for s in w_reads(True, 0): a(s)
    acc_init(a, True)
    w2_setup(a)
    st.stamp()
    poll(a, "g1", 23)
    st.stamp()
    a("v_mov_b32 v2, v3")
    vm = VM()
    gemm_loop(a, True, st, vm)
    st.stamp()
    a(f"""
    s_lshr_b32 s{sT}, s{sD0}, 6
    s_mul_i32 s{sT}, s{sT}, 22
    s_add_u32 s{sT}, s{sT}, s{sFT}
    s_lshl_b32 s{sT}, s{sT}, 7
    s_add_u32 s{sT}, s{sT}, {F2_REL}
    v_mov_b32 v23, s{sT}
    s_waitcnt vmcnt(0)
    s_barrier
    s_cmp_lg_u32 s{sWAVE}, 0
    s_cbranch_scc1 L_g2
    buffer_store_dword v2, v23, s[{S_FLAG}:{S_FLAG+3}], 0 offen sc1
    s_branch L_g2
    """)
    a.label("L_helper")
    n_save = st.n
    st.n = 1
    a(f"""
    s_mul_i32 s{sLDS}, s{sWAVE}, 16384
    s_waitcnt lgkmcnt(0)
    """)
    srd(a, S_DBG, P_DBG, 256)
    srd(a, S_FLAG, P_WS, F_BYTES, F_OFF)
    a(f"""
    s_cmp_ge_u32 s{sJ}, 8
    s_cbranch_scc1 L_spare
    s_mov_b32 s{sFT}, s2
    """)
    gen_ln(a, st)
    gen_f1.nonce_get(a, "ln")
    st.stamp()
    a(f"""
    s_barrier
    s_cmp_lg_u32 s{sWAVE}, 0
    s_cbranch_scc1 L_h2
    s_lshl_b32 s{sT}, s{sFT}, 7
    v_mov_b32 v23, s{sT}
    buffer_store_dword v3, v23, s[{S_FLAG}:{S_FLAG+3}], 0 offen sc1
    s_branch L_h2
    L_spare:
    s_xor_b32 s{sT}, s2, 64
    s_or_b32 s{sT}, s{sT}, s{sWAVE}
    s_cmp_lg_u32 s{sT}, 0
    s_cbranch_scc1 L_nononce
    s_or_b32 s62, s62, 1
    v_mov_b32 v3, s62
    v_mov_b32 v7, 0
    buffer_store_dword v3, v7, s[{S_DBG}:{S_DBG+3}], 0 offen sc1
    L_nononce:
    """)
    if C.cpf:
        a(f"""
        s_getpc_b64 s[{sT}:{sT+1}]
        L_pc:
        s_sub_u32 s{sT}, s{sT}, L_pc-{NAME}
        s_subb_u32 s{sT+1}, s{sT+1}, 0
        v_lshlrev_b32 v3, 7, v0
        v_cmp_gt_u32 vcc, L_end-{NAME}, v3
        s_and_saveexec_b64 s[{sOW}:{sOW+1}], vcc
        s_cbranch_execz L_cpf_done
        global_load_dword v28, v3, s[{sT}:{sT+1}]
        L_cpf_done:
        s_mov_b64 exec, -1
        """)
    def xcd_col(a):
        a(f"""
        s_lshr_b32 s{sT}, s{sX}, 1
        s_mul_i32 s{sT}, s{sT}, 22
        s_lshr_b32 s{sT}, s{sT}, 2
        s_lshl_b32 s{sCOL}, s{sT}, 7
        """)
    srd(a, S_W, P_W1, W_BYTES)
    if C.ghost:
        a(f"""
        s_lshr_b32 s{sT}, s{sX}, 2
        s_mul_i32 s{sT}, s{sT}, 11
        s_add_u32 s{sT}, s{sT}, 5
        s_lshl_b32 s{sCOL}, s{sT}, 7
        s_bfe_u32 s{sT}, s{sX}, 0x10001
        s_xor_b32 s{sT}, s{sT}, 1
        s_lshl_b32 s{sT}, s{sT}, 1
        s_add_u32 s{sT}, s{sT}, s{sJ}
        s_sub_u32 s{sT}, s{sT}, 8
        s_lshl_b32 s{sT2}, s{sWAVE}, 2
        s_add_u32 s{sT2}, s{sT2}, s{sT}
        s_mul_i32 s{sOW}, s{sT2}, {64*2752}
        s_add_u32 s{sOW}, s{sOW}, s{sCOL}
        s_add_u32 s{sT}, s{sT}, 16
        s_mul_i32 s{sOA}, s{sT}, {64*2752}
        s_add_u32 s{sOA}, s{sOA}, s{sCOL}
        s_mov_b32 s{sT}, 2752
        v_mul_lo_u32 v3, v1, s{sT}
        buffer_load_dword v24, v3, {SW}, s{sOW} offen
        buffer_load_dword v25, v3, {SW}, s{sOW} offen offset:124
        buffer_load_dword v26, v3, {SW}, s{sOA} offen
        buffer_load_dword v27, v3, {SW}, s{sOA} offen offset:124
        """)
    a.label("L_h2")
    srd(a, S_W, P_W1, W_BYTES)
    if C.w1rest:
        xcd_col(a)
        a(f"""
        s_mov_b32 s{sT}, 2752
        v_mul_lo_u32 v3, v1, s{sT}
        s_lshl_b32 s{sT}, s{sJ}, 2
        s_add_u32 s{sT}, s{sT}, s{sWAVE}       ; 0..39
        s_cmp_ge_u32 s{sJ}, 8
        s_cselect_b32 s{sKA}, -32, 48
        s_cselect_b32 s{sKW}, 8, 32            ; stride
        s_cselect_b32 s{sCNT}, 48, 84          ; end
        s_add_u32 s{sKA}, s{sKA}, s{sT}        ; unit
        L_w1r:
        s_mul_i32 s{sT}, s{sKA}, 37
        s_lshr_b32 s{sT}, s{sT}, 8
        s_mul_i32 s{sT2}, s{sT}, 7
        s_sub_u32 s{sT2}, s{sKA}, s{sT2}
        s_lshl_b32 s{sT2}, s{sT2}, 7
        s_add_u32 s{sT}, s{sT}, 20
        s_mul_i32 s{sOW}, s{sT}, {64*2752}
        s_add_u32 s{sOW}, s{sOW}, s{sT2}
        s_add_u32 s{sOW}, s{sOW}, s{sCOL}
        buffer_load_dword v24, v3, {SW}, s{sOW} offen
        s_add_u32 s{sKA}, s{sKA}, s{sKW}
        s_cmp_lt_u32 s{sKA}, s{sCNT}
        s_cbranch_scc1 L_w1r
        """)
    if C.hpf:
        srd(a, S_ACT, P_WS, HF_BYTES)
        a(f"""
        v_lshlrev_b32 v23, 7, v1
        """)
        poll(a, "h", 23)
        a(f"""
        v_and_b32 v3, 31, v1
        v_lshlrev_b32 v3, 7, v3
        v_lshrrev_b32 v4, 5, v1
        v_lshl_add_u32 v3, v4, 13, v3
        s_lshl_b32 s{sT}, s{sJ}, 2
        s_add_u32 s{sT}, s{sT}, s{sWAVE}
        s_lshl_b32 s{sT}, s{sT}, 14
        s_and_b32 s{sT2}, s{sX}, 1
        s_lshl_b32 s{sT2}, s{sT2}, 12
        s_add_u32 s{sOA}, s{sT}, s{sT2}
        """)
        for i in range(4):
            a(f"buffer_load_dword v{24+i}, v3, s[{S_ACT}:{S_ACT+3}], s{sOA} offen sc1")
            a(f"s_add_u32 s{sOA}, s{sOA}, {40*16384}")
    a(f"""
    s_barrier
    s_mul_i32 s{sLDS}, s{sKH}, {PAIR}
    s_lshl_b32 s{sT}, s{sDH}, 11
    s_add_u32 s{sLDS}, s{sLDS}, s{sT}
    """)
    st.stamp()
    w2_setup(a)
    tr_setup(a)
    for m in range(C.early):
        for s in w_dma(False, m): a(s)
    st.n = n_save
    a.label("L_g2")
    st.stamp()
    for m in range(C.early, NSLOT):
        for s in w_dma(False, m): a(s)
    g2_tile(a, sCOL, sD0)
    act_setup(a)
    srd(a, S_ACT, P_WS, UF_BYTES, UF_OFF)
    srd(a, S_W, P_B2, 4096)
    srd(a, S_OUT, P_OUT, HF_BYTES)
    a(f"""
    s_and_b32 s{sKA}, s{sX}, 1
    s_mul_i32 s{sKA}, s{sKA}, {11 if C.rot2 else 0}
    s_lshl_b32 s{sT}, s{sKH}, 5
    s_add_u32 s{sT}, s{sT}, s{sCOL}
    v_add_u32 v16, s{sT}, v6
    v_lshlrev_b32 v16, 1, v16
    buffer_load_ushort v{BIAS}, v16, s[{S_W}:{S_W+3}], 0 offen
    """)
    acc_zero(a)
    a(f"""
    v_min_u32 v23, 21, v1
    s_lshr_b32 s{sT}, s{sD0}, 6
    s_mul_i32 s{sT}, s{sT}, 22
    s_add_u32 s{sT}, s{sT}, 64
    v_add_u32 v23, s{sT}, v23
    v_lshlrev_b32 v23, 7, v23
    """)
    if C.utouch:
        a(f"""
        v_lshrrev_b32 v14, 3, v1
        v_lshlrev_b32 v14, 13, v14
        v_and_b32 v15, 7, v1
        v_lshl_add_u32 v14, v15, 7, v14
        s_and_b32 s{sT}, s{sJ}, 7
        s_lshl_b32 s{sT2}, s{sWAVE}, 3
        s_add_u32 s{sT}, s{sT}, s{sT2}
        s_lshl_b32 s{sT}, s{sT}, 16
        s_lshl_b32 s{sT2}, s{sD0}, 4
        s_add_u32 s{sT}, s{sT}, s{sT2}
        v_add_u32 v14, s{sT}, v14
        """)
    a("s_waitcnt vmcnt(0)\ns_barrier")
    for s in w_reads(False, 0): a(s)
    acc_init(a, False)
    st.stamp()
    poll(a, "g2", 23)
    st.stamp()
    vm = VM()
    if C.utouch:
        a(f"buffer_load_dword v15, v14, s[{S_ACT}:{S_ACT+3}], 0 offen sc1"); vm.issue('t')
    gemm_loop(a, False, st, vm)
    st.stamp()
    st.flush(P_WS, f"s{sWAVE}", "f")
    a.label("L_done")
    a("s_endpgm")
    a.label("L_end")
    a.raw('.section .rodata,"a"')
    a.raw(kernel_desc(NAME, max(HR + 8*(C.LA+1), 128), 100))
    open(out, 'w').write(a.text())

if __name__ == "__main__":
    main(sys.argv[1], sys.argv[2:])
```

```python
import sys, math
from asmlib import *
import stamps
from stamps import Stamps

HF_BYTES = 2048*512*2
UF_OFF = HF_BYTES
UF_BYTES = 172*8192
F_OFF = 4 << 20
F2_L = 64
FX_L = 64+176
F_BYTES = (64+176+176)*128
XB_OFF = 5 << 20
XB_BYTES = 176*8192
W_BYTES = 2048*2752
NAME = "standalone__mixer_token_mlp__prompt_kernel"
NSLOT = 20
PAIR = NSLOT*4096
PR = 5504

class Cfg:
    LA = 6
    e27 = 4
    sleep = 4
    sleep2 = 4
    TMO = 30000
    rot2 = 1
    hpf = 1
    w1rest = 1
    ghost = 1
    slow = 1
    nocomp = 0
    fine = 0
    xl = 25
    xc = 30
    noref = 0
    nox = 0
    hw2 = 1
    m16 = 0
    swave = 0
C = Cfg()

P_X, P_W1, P_B1, P_W2, P_B2, P_OUT, P_DBG, P_WS = 4, 6, 8, 10, 12, 14, 16, 18
S_W, S_ACT, S_X, S_OUT, S_FLAG, S_DBG = 20, 24, 28, 32, 36, 40
sX, sJ, sWAVE, sCOL, sD0, sKH, sDH, sLDS, sT, sT2, sKW, sKA, sOW, sOA, sCNT, sFT, sC1, sW4 = range(44, 62)
sLO, sLE = sC1, sCOL
RA = 24; RB = 40; RC = 56; BIAS = 72; BF = 80; FR = 96; HR = 128

def srd(a, s, lo, size, add=0):
    if add: a(f"s_add_u32 s{s}, s{lo}, {add}\ns_addc_u32 s{s+1}, s{lo+1}, 0")
    else: a(f"s_mov_b32 s{s}, s{lo}\ns_mov_b32 s{s+1}, s{lo+1}")
    a(f"s_mov_b32 s{s+2}, {size}\ns_mov_b32 s{s+3}, 0x20000")
def R4(s): return f"s[{s}:{s+3}]"

class VM:
    def __init__(self, name="vmcnt", mx=63): self.q = []; self.name = name; self.mx = mx
    def issue(self, tag): self.q.append(tag)
    def pending(self, tag): return tag in self.q
    def wait_for(self, a, tags):
        last = max((i for i, t in enumerate(self.q) if t in tags), default=-1)
        if last < 0: return
        a(f"s_waitcnt {self.name}({min(len(self.q)-1-last,self.mx)})")
        self.q = self.q[last+1:]

def poll4(a, label, vflagoff):
    a(f"""
    s_mov_b32 s{sCNT}, 0
    v_mov_b32 v7, 0
    L_poll_{label}:
    buffer_load_dword v2, v7, {R4(S_DBG)}, 0 offen sc1
    buffer_load_dwordx4 v[24:27], v{vflagoff}, {R4(S_FLAG)}, 0 offen sc1
    s_add_u32 s{sCNT}, s{sCNT}, 1
    s_waitcnt vmcnt(0)
    v_xor_b32 v24, v24, v2
    v_xor_b32 v25, v25, v2
    v_xor_b32 v26, v26, v2
    v_xor_b32 v27, v27, v2
    v_or3_b32 v24, v24, v25, v26
    v_not_b32 v25, v2
    v_and_b32 v25, 1, v25
    v_or3_b32 v24, v24, v25, v27
    v_cmp_ne_u32 vcc, 0, v24
    s_cbranch_vccz L_polled_{label}
    s_sleep {C.sleep2}
    s_cmp_lt_u32 s{sCNT}, {C.TMO}
    s_cbranch_scc1 L_poll_{label}
    L_polled_{label}:
    """)

def poll(a, label, vflagoff, have_nonce=False):
    a(f"s_mov_b32 s{sCNT}, 0")
    if not have_nonce: a("v_mov_b32 v7, 0")
    a(f"L_poll_{label}:")
    if not have_nonce: a(f"buffer_load_dword v2, v7, {R4(S_DBG)}, 0 offen sc1")
    a(f"""
    buffer_load_dword v4, v{vflagoff}, {R4(S_FLAG)}, 0 offen sc1
    s_add_u32 s{sCNT}, s{sCNT}, 1
    s_waitcnt vmcnt(0)
    v_or_b32 v16, 1, v4
    v_cmp_ne_u32 vcc, v2, v16
    v_cmp_ne_u32 s[{sT}:{sT+1}], v2, v4
    s_or_b64 vcc, vcc, s[{sT}:{sT+1}]
    s_cbranch_scc0 L_polled_{label}
    s_sleep {C.sleep}
    s_cmp_lt_u32 s{sCNT}, {C.TMO}
    s_cbranch_scc1 L_poll_{label}
    L_polled_{label}:
    """)

def dma_voff(a, rowb, scolbytes):
    a(f"""
    v_lshrrev_b32 v4, 3, v1
    s_mov_b32 s{sT}, {rowb}
    v_mul_lo_u32 v3, v4, s{sT}
    v_bfe_u32 v7, v1, 4, 1
    v_lshlrev_b32 v7, 2, v7
    v_and_b32 v4, 7, v1
    v_xor_b32 v4, v4, v7
    v_lshl_add_u32 v3, v4, 4, v3
    s_mul_i32 s{sT2}, s{sW4}, {16*rowb}
    """)
    if scolbytes is not None: a(f"s_add_u32 s{sT2}, s{sT2}, s{scolbytes}")
    a(f"v_add_u32 v8, s{sT2}, v3\nv_add_u32 v9, {8*rowb-1024}, v8")

def act_setup(a):
    a(f"""
    v_lshrrev_b32 v5, 5, v1
    v_and_b32 v6, 31, v1
    v_lshl_add_u32 v4, v5, 9, v6
    v_add_u32 v4, s{sD0}, v4
    v_lshlrev_b32 v4, 4, v4
    s_lshl_b32 s{sT}, s{sDH}, 9
    s_lshl_b32 s{sT2}, s{sKH}, 15
    s_add_u32 s{sT}, s{sT}, s{sT2}
    v_add_u32 v12, s{sT}, v4
    v_add_u32 v13, 0x4000, v12
    """)
def tr_setup(a, rel):
    a(f"""
    v_lshrrev_b32 v5, 5, v1
    v_bfe_u32 v7, v1, 2, 2
    v_lshl_add_u32 v16, v5, 3, v7
    v_lshlrev_b32 v16, 7, v16
    v_and_b32 v17, 3, v1
    v_lshl_add_u32 v16, v17, 3, v16
    v_bfe_u32 v17, v1, 4, 1
    v_lshl_add_u32 v16, v17, 5, v16
    v_bfe_u32 v17, v1, 3, 1
    """)
    if rel: a(f"v_xor_b32 v17, s{sKH}, v17")
    a(f"""
    v_lshl_add_u32 v16, v17, 6, v16
    s_mul_i32 s{sT}, s{sKH}, {PAIR}
    v_add_u32 v18, s{sT}, v16
    v_xor_b32 v19, 64, v18
    v_add_u32 v20, 0x10000, v18
    v_add_u32 v21, 0x10000, v19
    """)

def slot_of(g1, m): return (m % NSLOT) if g1 else ((m + 16) % NSLOT)
def adv2(sk): return f"s_add_u32 s{sk}, s{sk}, 1\ns_cmp_eq_u32 s{sk}, 22\ns_cselect_b32 s{sk}, 0, s{sk}"

def w_dma(a, g1, m):
    slot = slot_of(g1, m)
    a(f"s_add_u32 m0, s{sLDS}, {slot*4096}")
    if g1: a(f"s_add_u32 s{sOW}, s{sLO if m < 16 else sLE}, {(m&15)*64*PR}")
    else: a(f"s_lshl_b32 s{sOW}, s{sKW}, 18")
    a(f"buffer_load_dwordx4 v8, {R4(S_W)}, s{sOW} offen lds")
    a(f"buffer_load_dwordx4 v9, {R4(S_W)}, s{sOW} offen offset:1024 lds")
    if not g1: a(adv2(sKW))
def a_ld(g1, m):
    r = HR + 8*(m % (C.LA+1))
    S = R4(S_ACT)
    if g1:
        return [f"s_mov_b32 s{sOA}, {m*65536}\nbuffer_load_dwordx4 {vr(r,4)}, v12, {S}, s{sOA} offen sc1",
                f"buffer_load_dwordx4 {vr(r+4,4)}, v13, {S}, s{sOA} offen sc1"]
    return [f"s_lshl_b32 s{sOA}, s{sKA}, 16\nbuffer_load_dwordx4 {vr(r,4)}, v12, {S}, s{sOA} offen sc1",
            f"buffer_load_dwordx4 {vr(r+4,4)}, v13, {S}, s{sOA} offen sc1\n" + adv2(sKA)]
def w_reads(g1, m):
    slot = slot_of(g1, m)
    base = 18 if slot < 16 else 20
    off = (slot % 16)*4096
    out = []
    for h2 in range(2):
        for cb in range(2):
            r = FR + 16*(m&1) + 8*h2 + 4*cb
            if C.nocomp & 1: out.append(""); continue
            out.append(f"ds_read_b64_tr_b16 {vr(r,2)}, v{base+cb} offset:{off+h2*2048}\nds_read_b64_tr_b16 {vr(r+2,2)}, v{base+cb} offset:{off+h2*2048+512}")
    return out

BARS1 = [3, 7, 11, 15, 18, 26]
REF1 = [3, 3, 2, 2, 2, 0]
sPAT = [24, 25, 26, 27]
CNT_ADDR = PAIR + 15*4096
BARS2 = [3, 19]
NONCE_IN_LOOP = False

def xch_setup(a, g1):
    xs = 12 if g1 else 18
    a(f"""
    v_lshlrev_b32 v16, 4, v1
    s_mul_i32 s{sT}, s{sKH}, {PAIR}
    s_lshl_b32 s{sT2}, s{sDH}, 12
    s_add_u32 s{sT2}, s{sT2}, {xs*4096}
    s_add_u32 s{sT}, s{sT}, s{sT2}
    v_add_u32 v17, s{sT}, v16
    s_xor_b32 s{sT}, s{sKH}, 1
    s_mul_i32 s{sT}, s{sT}, {PAIR}
    s_add_u32 s{sT}, s{sT}, s{sT2}
    v_add_u32 v22, s{sT}, v16
    """)
    if g1:
        c0 = -2.0*math.sqrt(2.0/math.pi)*math.log2(math.e)
        c1 = c0*0.044715
        a(f"""
        s_mov_b32 s{sC1}, {hex(f2u(c1))}
        v_mov_b32 v14, {hex(f2u(c0))}
        v_mov_b32 v15, {hex(f2u(c0))}
        s_lshl_b32 s{sT}, s{sKH}, 5
        s_add_u32 s{sT}, s{sT}, s{sCOL}
        s_lshl_b32 s{sT}, s{sT}, 6
        s_add_u32 s{sT}, s{sT}, s{sD0}
        s_lshl_b32 s{sT2}, s{sDH}, 5
        s_add_u32 s{sT}, s{sT}, s{sT2}
        v_lshl_add_u32 v16, v5, 9, v6
        v_add_u32 v16, s{sT}, v16
        v_lshlrev_b32 v16, 4, v16
        s_lshr_b32 s{sT}, s{sD0}, 6
        s_mul_i32 s{sT}, s{sT}, 22
        s_add_u32 s{sT}, s{sT}, s{sFT}
        s_lshl_b32 s{sT}, s{sT}, 7
        s_add_u32 s{sT}, s{sT}, {F2_L*128}
        v_mov_b32 v23, s{sT}
        v_mov_b32 v10, {CNT_ADDR}
        v_mov_b32 v11, 1
        """)
    else:
        a(f"""
        s_lshl_b32 s{sT}, s{sKH}, 5
        s_add_u32 s{sT}, s{sT}, s{sCOL}
        v_add_u32 v16, s{sT}, v6
        v_lshlrev_b32 v16, 9, v16
        v_lshl_add_u32 v16, v5, 3, v16
        s_lshl_b32 s{sT2}, s{sDH}, 5
        s_add_u32 s{sT2}, s{sT2}, s{sD0}
        v_add_u32 v16, s{sT2}, v16
        v_lshlrev_b32 v16, 1, v16
        """)

def xcheck(j, R, T):
    t = "".join(f"v_xor_b32 v{T+r}, s{sPAT[r]}, v{R+4*j+r}\n" for r in range(4))
    if j == 0: t += f"v_or3_b32 v11, v{T}, v{T+1}, v{T+2}\nv_or_b32 v11, v11, v{T+3}"
    else: t += f"v_or3_b32 v11, v11, v{T}, v{T+1}\nv_or3_b32 v11, v11, v{T+2}, v{T+3}"
    return t

def gemm_loop(a, g1, st):
    NS = 32 if g1 else 22
    LA = C.LA; R = LA+1
    vm = VM()
    def mfma(m, h2, cb):
        if C.nocomp & 2: return ""
        w = vr(FR+16*(m&1)+8*h2+4*cb,4); h = vr(HR+8*(m%R)+4*h2,4)
        if g1:
            acc = (RA, RB)[cb] if m < 16 else (RC, RA)[cb]
            c = vr(acc,16)
            if C.m16: return "\n".join(f"v_mfma_f32_16x16x32_bf16 {vr(acc+8*h2+4*i,4)}, {w}, {vr(HR+8*(m%R)+4*i,4)}, {vr(acc+8*h2+4*i,4)}" for i in range(2))
            return f"v_mfma_f32_32x32x16_bf16 {c}, {w}, {h}, {c}"
        c = vr((RA, RB)[cb],16)
        acc = (RA, RB)[cb]
        if C.m16: return "\n".join(f"v_mfma_f32_16x16x32_bf16 {vr(acc+8*h2+4*i,4)}, {vr(HR+8*(m%R)+4*i,4)}, {w}, {vr(acc+8*h2+4*i,4)}" for i in range(2))
        return f"v_mfma_f32_32x32x16_bf16 {c}, {h}, {w}, {c}"
    a("s_barrier")
    st.stamp()
    for m in range(LA):
        for i, s in enumerate(a_ld(g1, m)): a(s); vm.issue(('a', m, i))
    if g1 and (17 not in BARS1 or NONCE_IN_LOOP):
        a(f"buffer_load_dword v2, v7, {R4(S_DBG)}, 0 offen sc1"); vm.issue('n')
    lg = VM("lgkmcnt", 15)
    for k, s in enumerate(w_reads(g1, 0)): a(s); lg.issue(('r', 0, k)); lg.issue(('r', 0, k))
    for m in range(NS):
        if C.fine == (1 if g1 else 2) and m % 4 == 1 and m < 30: st.stamp(wait=False, force=True)
        if m in (BARS1 if g1 else BARS2):
            lg.wait_for(a, {'xw'})
            a("s_barrier")
        ld = []
        if m+LA < NS: ld += [(s, ('a', m+LA, i)) for i, s in enumerate(a_ld(g1, m+LA))]
        va = []
        xw = []
        if g1 and 17 in BARS1:
            if m == 16 and not C.nox:
                xw = [None, None] + [f"ds_write_b128 v17, {vr(RB+8*j,4)} offset:{2048*j}\nds_write_b128 v17, {vr(RB+8*j+4,4)} offset:{2048*j+1024}" for j in (0, 1)]
        elif g1 and m in (16, 17) and not C.nox:
            xw = [None, None] + [f"ds_write_b128 v17, {vr(RB+4*j,4)} offset:{1024*j}" for j in (2*(m-16), 2*(m-16)+1)]
        assert len(ld) <= 4
        rd = w_reads(g1, m+1) if m+1 < NS else []
        k = 0
        for h2 in range(2):
            vm.wait_for(a, {('a', m, h2)} if not C.m16 else {('a', m, 1)})
            for cb in range(2):
                lg.wait_for(a, {('r', m, k)})
                a(mfma(m, h2, cb))
                if rd: a(rd[k]); lg.issue(('r', m+1, k)); lg.issue(('r', m+1, k))
                if k < len(ld): a(ld[k][0]); vm.issue(ld[k][1])
                if k < len(xw) and xw[k]:
                    a(xw[k])
                    for _ in range(xw[k].count("ds_write")): lg.issue('xw')
                k += 1
    st.stamp()
    T = HR
    if g1:
        a(f"s_cmp_lg_u32 s{sKH}, 0\ns_cbranch_scc1 L_x1")
        a("s_nop 9")
        for j in range(4): a(f"ds_write_b128 v17, {vr(RA+4*j,4)} offset:{j*1024}")
        for q in range(0,16,2): a(f"v_pk_add_f32 {vr(RB+q,2)}, {vr(RC+q,2)}, {vr(BF+q,2)}")
        a("s_waitcnt lgkmcnt(0)\ns_barrier")
        for j in range(4): a(f"ds_read_b128 {vr(RA+4*j,4)}, v17 offset:{8192+j*1024}")
        for j in range(4): a(f"ds_read_b128 {vr(BF+4*j,4)}, v22 offset:{j*1024}")
        for j in range(4):
            a(f"s_waitcnt lgkmcnt({7-j})")
            if not C.nox:
                a(f"v_pk_add_f32 {vr(RB+4*j,2)}, {vr(RB+4*j,2)}, {vr(RA+4*j,2)}")
                a(f"v_pk_add_f32 {vr(RB+4*j+2,2)}, {vr(RB+4*j+2,2)}, {vr(RA+4*j+2,2)}")
        a("s_branch L_x2")
        a("L_x1:")
        a("s_nop 8")
        for j in range(4): a(f"ds_write_b128 v17, {vr(RC+4*j,4)} offset:{j*1024}")
        for q in range(0,16,2): a(f"v_pk_add_f32 {vr(RB+q,2)}, {vr(RA+q,2)}, {vr(BF+q,2)}")
        a("s_waitcnt lgkmcnt(0)\ns_barrier")
        for j in range(4): a(f"ds_read_b128 {vr(BF+4*j,4)}, v22 offset:{j*1024}")
        a("L_x2:")
        D = RB; RECV = BF
    else:
        a("s_nop 11")
        for j in range(4): a(f"ds_write_b128 v17, {vr(RB+4*j,4)} offset:{j*1024}")
        D = RA; RECV = RC
        a("s_waitcnt lgkmcnt(0)\ns_barrier")
        for j in range(4): a(f"ds_read_b128 {vr(RECV+4*j,4)}, v22 offset:{j*1024}")
    P = T+16
    for jp in range(2):
        qs = range(8*jp, 8*jp+8, 2)
        for j in (2*jp, 2*jp+1):
            a(f"s_waitcnt lgkmcnt({3-j})")
            a(f"v_pk_add_f32 {vr(D+4*j,2)}, {vr(D+4*j,2)}, {vr(RECV+4*j,2)}")
            a(f"v_pk_add_f32 {vr(D+4*j+2,2)}, {vr(D+4*j+2,2)}, {vr(RECV+4*j+2,2)}")
        if g1:
            for q in qs: a(f"v_pk_mul_f32 {vr(T+q,2)}, {vr(D+q,2)}, {vr(D+q,2)}")
            for q in qs: a(f"v_pk_fma_f32 {vr(T+q,2)}, {vr(T+q,2)}, s[{sC1}:{sC1+1}], v[14:15] op_sel_hi:[1,0,1]")
            for q in qs: a(f"v_pk_mul_f32 {vr(T+q,2)}, {vr(T+q,2)}, {vr(D+q,2)}")
            for q in range(8*jp, 8*jp+8): a(f"v_exp_f32 v{T+q}, v{T+q}")
            for q in qs: a(f"v_pk_add_f32 {vr(T+q,2)}, {vr(T+q,2)}, 1.0 op_sel_hi:[1,0]")
            for q in range(8*jp, 8*jp+8): a(f"v_rcp_f32 v{T+q}, v{T+q}")
            for q in qs: a(f"v_pk_mul_f32 {vr(D+q,2)}, {vr(T+q,2)}, {vr(D+q,2)}")
        for j in (2*jp, 2*jp+1):
            a(f"v_cvt_pk_bf16_f32 v{P+2*j}, v{D+4*j}, v{D+4*j+1}")
            a(f"v_cvt_pk_bf16_f32 v{P+2*j+1}, v{D+4*j+2}, v{D+4*j+3}")
        a("s_nop 1")
        a(f"v_permlane32_swap_b32 v{P+4*jp}, v{P+4*jp+2}")
        a(f"v_permlane32_swap_b32 v{P+4*jp+1}, v{P+4*jp+3}")
        if g1:
            a(f"s_mov_b32 s{sT}, {jp*2*8192}")
            a(f"buffer_store_dwordx4 {vr(P+4*jp,4)}, v16, {R4(S_OUT)}, s{sT} offen sc1")
        else:
            a(f"buffer_store_dwordx4 {vr(P+4*jp,4)}, v16, {R4(S_OUT)}, 0 offen offset:{32*jp}")

def gen_ln(a, st):
    srd(a, S_W, P_X, HF_BYTES)
    a(f"""
    s_and_b32 s{sT}, s2, 31
    s_lshl_b32 s{sT}, s{sT}, 6
    s_lshl_b32 s{sT2}, s{sWAVE}, 3
    s_add_u32 s{sT}, s{sT}, s{sT2}
    s_lshr_b32 s{sT2}, s2, 5
    s_sub_u32 s{sT}, s{sT}, s{sT2}
    s_add_u32 s{sT}, s{sT}, 1
    s_lshl_b32 s{sOW}, s{sT}, 10
    s_add_u32 s{sOA}, s{sOW}, 4096
    v_lshlrev_b32 v3, 4, v1
    """)
    for j in range(4):
        a(f"buffer_load_dwordx4 {vr(8+4*j,4)}, v3, {R4(S_W)}, s{sOW if j<2 else sOA} offen offset:{(j&1)*2048}")
    srd(a, S_OUT, P_WS, HF_BYTES)
    srd(a, S_DBG, P_DBG, 256)
    srd(a, S_FLAG, P_WS, F_BYTES, F_OFF)
    a(f"""
    v_and_b32 v66, 7, v1
    v_lshlrev_b32 v64, 7, v1
    v_lshl_add_u32 v64, v66, 4, v64
    s_lshr_b32 s{sT}, s{sWAVE}, 1
    s_lshl_b32 s{sT}, s{sT}, 13
    s_lshl_b32 s{sT2}, s{sDH}, 3
    s_add_u32 s{sT}, s{sT}, s{sT2}
    v_add_u32 v64, s{sT}, v64
    v_lshrrev_b32 v67, 3, v1
    v_xor_b32 v66, v66, v67
    v_lshlrev_b32 v65, 7, v67
    v_lshl_add_u32 v65, v66, 4, v65
    s_lshl_b32 s{sT}, s{sWAVE}, 12
    v_add_u32 v65, s{sT}, v65
    s_lshl_b32 s{sKA}, s2, 15
    s_add_u32 s{sKA}, s{sKA}, s{sT}
    v_mov_b32 v68, {hex(f2u(1e-5))}
    v_mov_b32 v69, {hex(f2u(1.0/512))}
    """)
    E = 24
    def e(j,i): return E+8*j+i
    S = 56
    for j in range(4):
        a(f"s_waitcnt vmcnt({3-j})")
        for i in range(4):
            a(f"v_lshlrev_b32 {vr(e(j,2*i))}, 16, {vr(8+4*j+i)}")
            a(f"v_and_b32 {vr(e(j,2*i+1))}, 0xffff0000, {vr(8+4*j+i)}")
        a(f"v_pk_add_f32 {vr(S+2*j,2)}, {vr(e(j,0),2)}, {vr(e(j,2),2)}")
        a(f"v_pk_add_f32 v[70:71], {vr(e(j,4),2)}, {vr(e(j,6),2)}")
        a(f"v_pk_add_f32 {vr(S+2*j,2)}, {vr(S+2*j,2)}, v[70:71]")
        a(f"v_add_f32 {vr(S+2*j)}, {vr(S+2*j)}, {vr(S+2*j+1)}")
    st.stamp()
    a(f"v_mov_b32 v7, 0\nbuffer_load_dword v2, v7, {R4(S_DBG)}, 0 offen sc1")
    def reduce4():
        a("s_nop 1")
        a(f"v_permlane32_swap_b32 {vr(S)}, {vr(S+2)}")
        a(f"v_permlane32_swap_b32 {vr(S+4)}, {vr(S+6)}")
        a("s_nop 0")
        a(f"v_add_f32 {vr(S)}, {vr(S)}, {vr(S+2)}")
        a(f"v_add_f32 {vr(S+4)}, {vr(S+4)}, {vr(S+6)}")
        a("s_nop 1")
        a(f"v_permlane16_swap_b32 {vr(S)}, {vr(S+4)}")
        a("s_nop 1")
        a(f"v_add_f32 {vr(S)}, {vr(S)}, {vr(S+4)}")
        for sh in (8,4,2,1):
            a("s_nop 1")
            a(f"v_add_f32_dpp {vr(S)}, {vr(S)}, {vr(S)} row_ror:{sh} row_mask:0xf bank_mask:0xf")
    SC = [24, 26, 28, 30]
    def readl():
        a("s_nop 1")
        for j, ln in ((0,0),(2,16),(1,32),(3,48)):
            a(f"v_readlane_b32 s{SC[j]}, {vr(S)}, {ln}")
        a("s_nop 1")
    reduce4()
    a(f"v_mul_f32 {vr(S)}, {hex(f2u(-1.0/512))}, {vr(S)}")
    readl()
    for j in range(4):
        for i in range(4):
            a(f"v_pk_add_f32 {vr(e(j,2*i),2)}, {vr(e(j,2*i),2)}, s[{SC[j]}:{SC[j]+1}] op_sel_hi:[1,0]")
        a(f"v_pk_mul_f32 {vr(S+2*j,2)}, {vr(e(j,0),2)}, {vr(e(j,0),2)}")
        for i in range(1,4):
            a(f"v_pk_fma_f32 {vr(S+2*j,2)}, {vr(e(j,2*i),2)}, {vr(e(j,2*i),2)}, {vr(S+2*j,2)}")
        a(f"v_add_f32 {vr(S+2*j)}, {vr(S+2*j)}, {vr(S+2*j+1)}")
    reduce4()
    a(f"v_fma_f32 {vr(S)}, {vr(S)}, v69, v68")
    a(f"v_rsq_f32 {vr(S)}, {vr(S)}")
    readl()
    for j in range(4):
        for i in range(4):
            a(f"v_pk_mul_f32 {vr(e(j,2*i),2)}, {vr(e(j,2*i),2)}, s[{SC[j]}:{SC[j]+1}] op_sel_hi:[1,0]")
    for i in range(8):
        a(f"v_cvt_pk_bf16_f32 {vr(8+2*i)}, {vr(e(0,i))}, {vr(e(1,i))}")
        a(f"v_cvt_pk_bf16_f32 {vr(9+2*i)}, {vr(e(2,i))}, {vr(e(3,i))}")
        a(f"v_xor_b32 v66, {i<<4}, v64")
        a(f"ds_write_b64 v66, {vr(8+2*i,2)}")
    a("s_waitcnt lgkmcnt(0)\ns_barrier")
    for q in range(4):
        a(f"ds_read_b128 {vr(24+4*q,4)}, v65 offset:{1024*q}")
    for q in range(4):
        a(f"s_waitcnt lgkmcnt({3-q})")
        a(f"buffer_store_dwordx4 {vr(24+4*q,4)}, v3, {R4(S_OUT)}, s{sKA} offen offset:{q*1024} sc1")
    st.stamp()
    a(f"""
    s_waitcnt vmcnt(0)
    s_barrier
    s_cmp_lg_u32 s{sWAVE}, 0
    s_cbranch_scc1 L_lnb
    s_mov_b32 s{sCNT}, 0
    L_nonce:
    v_cmp_eq_u32 vcc, 0, v2
    s_cbranch_vccz L_nonced
    buffer_load_dword v2, v7, {R4(S_DBG)}, 0 offen sc1
    s_add_u32 s{sCNT}, s{sCNT}, 1
    s_waitcnt vmcnt(0)
    s_cmp_lt_u32 s{sCNT}, {C.TMO}
    s_cbranch_scc1 L_nonce
    L_nonced:
    s_lshl_b32 s{sT}, s2, 7
    v_mov_b32 v23, s{sT}
    buffer_store_dword v2, v23, {R4(S_FLAG)}, 0 offen sc1
    """)
    st.stamp()
    a("L_lnb:\ns_barrier\ns_branch L_h2")

def g2_tile(a):
    a(f"""
    s_and_b32 s{sT2}, s{sJ}, 7
    s_lshr_b32 s{sT}, s{sX}, 1
    s_lshl_b32 s{sT}, s{sT}, 3
    s_add_u32 s{sCOL}, s{sT}, s{sT2}
    s_lshl_b32 s{sCOL}, s{sCOL}, 6
    s_and_b32 s{sT}, s{sX}, 1
    s_mul_i32 s{sKW}, s{sT}, {11 if C.rot2 else 0}
    s_mov_b32 s{sKA}, s{sKW}
    s_lshl_b32 s{sT}, s{sT}, 2
    s_lshr_b32 s{sD0}, s{sJ}, 3
    s_add_u32 s{sD0}, s{sD0}, s{sT}
    s_lshl_b32 s{sD0}, s{sD0}, 6
    """)
def b2_load(a):
    srd(a, S_X, P_B2, 4096)
    a(f"""
    s_and_b32 s{sT2}, s{sJ}, 7
    s_lshr_b32 s{sT}, s{sX}, 1
    s_lshl_b32 s{sT}, s{sT}, 3
    s_add_u32 s{sT}, s{sT}, s{sT2}
    s_lshl_b32 s{sT}, s{sT}, 1
    s_add_u32 s{sT}, s{sT}, s{sKH}
    s_lshl_b32 s{sT}, s{sT}, 6
    v_and_b32 v16, 31, v1
    v_lshlrev_b32 v16, 1, v16
    buffer_load_ushort v9, v16, {R4(S_X)}, s{sT} offen
    """)
def w2_setup(a):
    g2_tile(a)
    a(f"s_lshl_b32 s{sCOL}, s{sCOL}, 1")
    srd(a, S_W, P_W2, W_BYTES)
    dma_voff(a, 4096, sCOL)

def main(out, opts):
    for o in opts:
        k, v = o.split('=')
        if k == 'stamp': stamps.STAMP = bool(int(v)); continue
        if k == 'cyc': stamps.CYC = bool(int(v)); continue
        cur = getattr(C, k)
        setattr(C, k, int(v) if isinstance(cur, int) else v.replace('_', ' '))
    if C.fine == 1: stamps.ONLY = {2, 3, 4}
    if C.fine == 2: stamps.ONLY = {11, 12, 13}
    a = Asm()
    a.raw(HEADER.rstrip('\n'))
    a.raw(f"; @launch grid=(256,1,1) block=(512,1,1) lds={2*PAIR}")
    a.raw('.amdgcn_target "amdgcn-amd-amdhsa--gfx950"')
    a.raw(".text")
    kernel_begin(a, NAME)
    a("s_cmp_ge_u32 s2, 256\ns_cbranch_scc1 L_done")
    st = Stamps(a, 0)
    st.stamp()
    a(f"""
    s_load_dwordx16 s[4:19], s[0:1], 0
    s_memrealtime s[62:63]
    s_and_b32 s{sX}, s2, 7
    s_lshr_b32 s{sJ}, s2, 3
    v_and_b32 v1, 63, v0
    v_lshrrev_b32 v2, 6, v0
    s_nop 0
    v_readfirstlane_b32 s{sWAVE}, v2
    s_nop 3
    s_and_b32 s{sW4}, s{sWAVE}, 3
    s_lshr_b32 s{sKH}, s{sW4}, 1
    s_and_b32 s{sDH}, s{sWAVE}, 1
    s_mul_i32 s{sLDS}, s{sKH}, {PAIR}
    s_lshl_b32 s{sT}, s{sDH}, 11
    s_add_u32 s{sLDS}, s{sLDS}, s{sT}
    s_cmp_lt_u32 s{sJ}, 10
    s_cbranch_scc1 L_helper
    s_lshr_b32 s{sT}, s{sX}, 1
    s_mul_i32 s{sT}, s{sT}, 22
    s_add_u32 s{sT}, s{sT}, s{sJ}
    s_sub_u32 s{sT}, s{sT}, 10
    s_lshr_b32 s{sFT}, s{sT}, 2
    s_and_b32 s{sKA}, s{sT}, 3
    s_cmp_ge_u32 s{sWAVE}, 4
    s_cbranch_scc1 L_loader1
    """)
    a(f"""
    s_and_b32 s{sT}, s{sX}, 1
    s_lshl_b32 s{sT}, s{sT}, 2
    s_add_u32 s{sD0}, s{sKA}, s{sT}      ; dt
    """)
    a(f"""
    s_lshl_b32 s{sD0}, s{sD0}, 6
    s_lshl_b32 s{sCOL}, s{sFT}, 6
    """)
    act_setup(a)
    tr_setup(a, False)
    a("s_waitcnt lgkmcnt(0)")
    srd(a, S_W, P_B1, 2752)
    a(f"""
    s_lshl_b32 s{sT}, s{sKH}, 5
    s_add_u32 s{sT}, s{sT}, s{sCOL}
    s_lshl_b32 s{sT}, s{sT}, 1
    v_lshlrev_b32 v16, 3, v5
    v_add_u32 v16, s{sT}, v16
    """)
    for j in range(4):
        a(f"buffer_load_dwordx2 {vr(BIAS+2*j,2)}, v16, {R4(S_W)}, 0 offen offset:{16*j}")
    b2_load(a)
    srd(a, S_DBG, P_DBG, 256)
    srd(a, S_FLAG, P_WS, F_BYTES, F_OFF)
    srd(a, S_ACT, P_WS, HF_BYTES)
    srd(a, S_OUT, P_WS, UF_BYTES, UF_OFF)
    for i in range(48): a(f"v_mov_b32 v{RA+i}, 0")
    xch_setup(a, True)
    a("s_waitcnt vmcnt(0)")
    for j in range(4):
        for r in range(4):
            b = BIAS+2*j+(r>>1)
            if r&1: a(f"v_and_b32 v{BF+4*j+r}, 0xffff0000, v{b}")
            else: a(f"v_lshlrev_b32 v{BF+4*j+r}, 16, v{b}")
    a("v_mov_b32 v7, 0")
    st.stamp()
    st.stamp()
    gemm_loop(a, True, st)
    st.stamp()
    a(f"""
    s_mov_b64 exec, 1
    s_waitcnt vmcnt(0)
    ds_add_rtn_u32 v11, v10, v11
    s_waitcnt lgkmcnt(0)
    v_cmp_eq_u32 vcc, 3, v11
    s_cbranch_vccz L_nopub
    buffer_store_dword v2, v23, {R4(S_FLAG)}, 0 offen sc1
    L_nopub:
    s_mov_b64 exec, -1
    s_branch L_g2d
    """)
    n_save = st.n
    a.label("L_loader1")
    class LS:
        def stamp(self, i):
            if stamps.STAMP and C.swave == 4:
                a(f"s_memrealtime s[{64+2*i}:{65+2*i}]\ns_waitcnt lgkmcnt(0)")
    ls = LS()
    dma_voff(a, PR, None)
    a(f"""
    s_lshl_b32 s{sLE}, s{sFT}, 7
    s_add_u32 s{sLO}, s{sLE}, {22*128}
    s_cmp_eq_u32 s{sFT}, 21
    s_cselect_b32 s{sLO}, s{sLE}, s{sLO}
    s_waitcnt lgkmcnt(0)
    """)
    srd(a, S_W, P_W1, W_BYTES)
    for b in range(4):
        a(f"""
        s_add_u32 s{sT}, s{sKA}, {b}
        s_and_b32 s{sT}, s{sT}, 3
        s_mul_i32 s{sT2}, s{sT}, {64*PR}
        s_add_u32 s{sOW}, s{sT2}, s{sLO}
        s_lshl_b32 s{sT}, s{sT}, 12
        s_add_u32 s{sT}, s{sT}, s{sLDS}
        """)
        for q in range(5):
            a(f"s_add_u32 m0, s{sT}, {q*16384}")
            if q == 4: a(f"s_add_u32 s{sOW}, s{sT2}, s{sLE}")
            elif q: a(f"s_add_u32 s{sOW}, s{sOW}, {4*64*PR}")
            else: a("s_nop 0")
            a(f"buffer_load_dwordx4 v8, {R4(S_W)}, s{sOW} offen lds")
            if b == 0 and q == 0 and C.slow: a("s_waitcnt vmcnt(0)")
            a(f"buffer_load_dwordx4 v9, {R4(S_W)}, s{sOW} offen offset:1024 lds")
    srd(a, S_DBG, P_DBG, 256)
    srd(a, S_FLAG, P_WS, F_BYTES, F_OFF)
    ls.stamp(1)
    if stamps.STAMP and C.swave == 4: a("s_waitcnt vmcnt(0)")
    ls.stamp(2)
    a(f"v_lshlrev_b32 v23, 7, v1\ns_cmp_lg_u32 s{sWAVE}, 4\ns_cbranch_scc1 L_polled_g1")
    poll(a, "g1", 23)
    ls.stamp(3)
    a("s_waitcnt vmcnt(0)\ns_barrier")
    a(f"""
    v_mov_b32 v7, 0
    buffer_load_dword v2, v7, {R4(S_DBG)}, 0 offen sc1
    s_and_b32 s{sT}, s{sX}, 1
    s_lshl_b32 s{sT}, s{sT}, 2
    s_add_u32 s{sD0}, s{sKA}, s{sT}
    s_lshl_b32 s{sT}, s{sFT}, 3
    s_add_u32 s{sT}, s{sT}, s{sD0}
    s_sub_u32 s{sT2}, s{sT}, 8
    s_add_u32 s{sOA}, s{sD0}, 168
    s_cmp_eq_u32 s{sFT}, 0
    s_cselect_b32 s{sT2}, s{sOA}, s{sT2}
    s_cmp_eq_u32 s{sKH}, 0
    s_cselect_b32 s{sT}, s{sT2}, s{sT}
    s_lshl_b32 s{sT}, s{sT}, 13
    s_lshl_b32 s{sT2}, s{sDH}, 12
    s_add_u32 s{sT}, s{sT}, s{sT2}
    v_lshlrev_b32 v16, 4, v1
    v_add_u32 v14, s{sT}, v16
    s_add_u32 s{sT2}, s{sT2}, {12*4096}
    v_add_u32 v17, s{sT2}, v16
    v_add_u32 v18, {PAIR}, v17
    v_mov_b32 v10, 0xff
    v_mov_b32 v12, {CNT_ADDR}
    """)
    srd(a, S_X, P_WS, XB_BYTES, XB_OFF)
    nr = 20
    for i, bm in enumerate(BARS1):
        if bm == 18:
            a(f"""
            s_waitcnt vmcnt({0 if C.noref else 6})
            v_readfirstlane_b32 s{sPAT[0]}, v2
            s_nop 3
            s_mul_i32 s{sPAT[0]}, s{sPAT[0]}, 0x9e3779b1
            s_lshr_b32 s{sPAT[1]}, s{sPAT[0]}, 8
            s_lshr_b32 s{sPAT[2]}, s{sPAT[0]}, 16
            s_lshr_b32 s{sPAT[3]}, s{sPAT[0]}, 24
            """)
        a("s_barrier")
        for _ in range(REF1[i]):
            if not C.noref: w_dma(a, True, nr)
            nr += 1
        if bm == 18:
            a(f"ds_write_b32 v12, v7")
            a(f"s_cmp_eq_u32 s{sKH}, 0\ns_cbranch_scc1 L_lx0")
            for j in range(4): a(f"ds_read_b128 {vr(24+4*j,4)}, v17 offset:{1024*j}\nds_read_b128 {vr(40+4*j,4)}, v18 offset:{1024*j}")
            for j in range(4):
                a(f"s_waitcnt lgkmcnt({6-2*j})")
                a(f"v_pk_add_f32 {vr(24+4*j,2)}, {vr(24+4*j,2)}, {vr(40+4*j,2)}\nv_pk_add_f32 {vr(26+4*j,2)}, {vr(26+4*j,2)}, {vr(42+4*j,2)}")
                for r in range(4): a(f"v_bfi_b32 v{24+4*j+r}, v10, s{sPAT[r]}, v{24+4*j+r}")
                a(f"buffer_store_dwordx4 {vr(24+4*j,4)}, v14, {R4(S_X)}, 0 offen offset:{1024*j} sc1")
            a("s_waitcnt vmcnt(4)\ns_branch L_lx1")
            a("L_lx0:\ns_waitcnt vmcnt(0)\nL_lx1:")
            w2_setup(a)
            a("s_waitcnt lgkmcnt(0)")
    assert nr == 32
    ls.stamp(4)
    a(f"s_cmp_lg_u32 s{sKH}, 0\ns_cbranch_scc1 L_lx3")
    if C.nox: a("s_branch L_lx3")
    a(f"s_mov_b32 s{sCNT}, 0\nL_lx2:")
    for j in range(4): a(f"buffer_load_dwordx4 {vr(24+4*j,4)}, v14, {R4(S_X)}, 0 offen offset:{1024*j} sc1")
    a(f"s_add_u32 s{sCNT}, s{sCNT}, 1\ns_waitcnt vmcnt(0)")
    for j in range(4): a(xcheck(j, 24, 40))
    a(f"""
    v_and_b32 v11, v10, v11
    v_cmp_ne_u32 vcc, 0, v11
    s_cbranch_vccz L_lxok
    s_cmp_lt_u32 s{sCNT}, {C.TMO}
    s_cbranch_scc1 L_lx2
    L_lxok:
    """)
    for j in range(4): a(f"ds_write_b128 v17, {vr(24+4*j,4)} offset:{8192+1024*j}")
    a("L_lx3:")
    for m in range(C.e27): w_dma(a, False, m)
    ls.stamp(5)
    a("s_waitcnt lgkmcnt(0)\ns_barrier")
    ls.stamp(6)
    a("s_branch L_g2l")
    a.label("L_helper")
    st.n = 1
    a(f"""
    s_waitcnt lgkmcnt(0)
    s_cmp_ge_u32 s{sJ}, 8
    s_cbranch_scc1 L_spare
    """)
    gen_ln(a, st)
    a.label("L_spare")
    srd(a, S_DBG, P_DBG, 256)
    srd(a, S_FLAG, P_WS, F_BYTES, F_OFF)
    srd(a, S_W, P_W1, W_BYTES)
    a(f"""
    s_xor_b32 s{sT}, s2, 64
    s_or_b32 s{sT}, s{sT}, s{sWAVE}
    s_cmp_lg_u32 s{sT}, 0
    s_cbranch_scc1 L_nononce
    s_or_b32 s62, s62, 1
    v_mov_b32 v3, s62
    v_mov_b32 v7, 0
    buffer_store_dword v3, v7, {R4(S_DBG)}, 0 offen sc1
    L_nononce:
    """)
    if C.ghost:
        a(f"""
        s_cmp_ge_u32 s{sWAVE}, 5
        s_cbranch_scc1 L_h2
        s_lshr_b32 s{sT}, s{sX}, 2
        s_mul_i32 s{sT}, s{sT}, 11
        s_add_u32 s{sT}, s{sT}, 5
        s_cmp_lt_u32 s{sWAVE}, 4
        s_cselect_b32 s{sT2}, 22, 0
        s_add_u32 s{sT}, s{sT}, s{sT2}
        s_lshl_b32 s{sCOL}, s{sT}, 7
        s_bfe_u32 s{sT}, s{sX}, 0x10001
        s_xor_b32 s{sT}, s{sT}, 1
        s_lshl_b32 s{sT}, s{sT}, 1
        s_add_u32 s{sT}, s{sT}, s{sJ}
        s_sub_u32 s{sT}, s{sT}, 8
        s_lshl_b32 s{sT2}, s{sW4}, 2
        s_add_u32 s{sT2}, s{sT2}, s{sT}
        s_mul_i32 s{sOW}, s{sT2}, {64*PR}
        s_add_u32 s{sOW}, s{sOW}, s{sCOL}
        v_mul_u32_u24 v3, {PR}, v1
        buffer_load_dword v24, v3, {R4(S_W)}, s{sOW} offen
        """)
    a.label("L_h2")
    srd(a, S_W, P_W1, W_BYTES)
    if C.w1rest:
        a(f"""
        s_lshr_b32 s{sT}, s{sX}, 1
        s_mul_i32 s{sT}, s{sT}, 22
        s_lshr_b32 s{sT}, s{sT}, 2
        s_lshl_b32 s{sCOL}, s{sT}, 7
        v_mul_u32_u24 v3, {PR}, v1
        s_mul_i32 s{sT}, s{sJ}, 5
        s_add_u32 s{sT}, s{sT}, 29
        s_lshl_b32 s{sT2}, s{sJ}, 3
        s_sub_u32 s{sT2}, s{sT2}, 64
        s_cmp_ge_u32 s{sJ}, 8
        s_cselect_b32 s{sKA}, s{sT2}, s{sT}
        s_cselect_b32 s{sCNT}, 2, 1
        s_cselect_b32 s{sT}, 0, 3
        s_add_u32 s{sKA}, s{sKA}, s{sWAVE}
        s_cmp_lt_u32 s{sWAVE}, s{sT}
        s_cbranch_scc1 L_w1r_done
        L_w1r:
        s_mul_i32 s{sT}, s{sKA}, 43
        s_lshr_b32 s{sT}, s{sT}, 8             ; unit/6
        s_mul_i32 s{sT2}, s{sT}, 6
        s_sub_u32 s{sT2}, s{sKA}, s{sT2}
        s_lshl_b32 s{sT2}, s{sT2}, 7
        s_add_u32 s{sT}, s{sT}, 4
        s_mul_i32 s{sOW}, s{sT}, {64*PR}
        s_add_u32 s{sOW}, s{sOW}, s{sT2}
        s_add_u32 s{sOW}, s{sOW}, s{sCOL}
        buffer_load_dword v24, v3, {R4(S_W)}, s{sOW} offen
        s_add_u32 s{sKA}, s{sKA}, 16
        s_sub_u32 s{sCNT}, s{sCNT}, 1
        s_cmp_lg_u32 s{sCNT}, 0
        s_cbranch_scc1 L_w1r
        L_w1r_done:
        """)
    if C.hpf:
        srd(a, S_ACT, P_WS, HF_BYTES)
        a(f"v_lshlrev_b32 v23, 7, v1\ns_cmp_lg_u32 s{sWAVE}, 0\ns_cbranch_scc1 L_polled_h")
        poll(a, "h", 23)
        a("s_barrier")
        a(f"""
        v_and_b32 v3, 31, v1
        v_lshlrev_b32 v3, 7, v3
        v_lshrrev_b32 v4, 5, v1
        v_lshl_add_u32 v3, v4, 13, v3
        s_mul_i32 s{sT}, s{sWAVE}, 10
        s_add_u32 s{sT}, s{sT}, s{sJ}
        s_lshl_b32 s{sT}, s{sT}, 14
        s_and_b32 s{sT2}, s{sX}, 1
        s_lshl_b32 s{sT2}, s{sT2}, 12
        s_add_u32 s{sOA}, s{sT}, s{sT2}
        buffer_load_dword v24, v3, {R4(S_ACT)}, s{sOA} offen sc1
        s_add_u32 s{sOA}, s{sOA}, {80*16384}
        buffer_load_dword v25, v3, {R4(S_ACT)}, s{sOA} offen sc1
        """)
    a("s_barrier")
    st.stamp()
    a(f"s_cmp_lt_u32 s{sWAVE}, 4\ns_cbranch_scc1 L_g2c")
    w2_setup(a)
    if not C.hw2:
        for i in range(5): a("s_sleep 32")
    for m in range(C.e27): w_dma(a, False, m)
    a.label("L_g2l")
    for m in range(C.e27, 16): w_dma(a, False, m)
    ls.stamp(7)
    a("s_barrier")
    ls.stamp(8)
    for m in (16, 17, 18, 19): w_dma(a, False, m)
    if stamps.STAMP and C.swave == 4: a("s_waitcnt vmcnt(0)")
    ls.stamp(9)
    a(f"""
    v_min_u32 v23, 21, v1
    s_lshr_b32 s{sT}, s{sD0}, 6
    s_mul_i32 s{sT}, s{sT}, 22
    s_add_u32 s{sT}, s{sT}, {F2_L}
    v_add_u32 v23, s{sT}, v23
    v_lshlrev_b32 v23, 7, v23
    s_cmp_lg_u32 s{sWAVE}, 4
    s_cbranch_scc1 L_polled_g2
    """)
    poll(a, "g2", 23)
    ls.stamp(10)
    a("s_waitcnt vmcnt(0)\ns_barrier")
    a("s_barrier")
    for m in (20, 21): w_dma(a, False, m)
    a("s_waitcnt vmcnt(0)\ns_barrier")
    if C.swave == 4:
        st.n = 11
        a(f"s_xor_b32 s{sT}, s{sWAVE}, 4")
        st.flush(P_WS, f"s{sT}", "l")
    a("s_endpgm")
    st.n = n_save
    a.label("L_g2c")
    b2_load(a)
    a("s_waitcnt vmcnt(0)")
    a.label("L_g2d")
    st.stamp()
    g2_tile(a)
    act_setup(a)
    tr_setup(a, True)
    xch_setup(a, False)
    srd(a, S_ACT, P_WS, UF_BYTES, UF_OFF)
    srd(a, S_OUT, P_OUT, HF_BYTES)
    for q in range(16): a(f"v_lshlrev_b32 v{RA+q}, 16, v9")
    for q in range(16): a(f"v_mov_b32 v{RB+q}, 0")
    a("s_barrier")
    st.stamp()
    st.stamp()
    gemm_loop(a, False, st)
    st.stamp()
    if C.swave != 4: st.flush(P_WS, f"s{sWAVE}", "f")
    a.label("L_done")
    a("s_endpgm")
    a.raw('.section .rodata,"a"')
    a.raw(kernel_desc(NAME, HR + 8*(C.LA+1), 100))
    open(out, 'w').write(a.text())

if __name__ == "__main__":
    main(sys.argv[1], sys.argv[2:])
```

```python
import sys, math
from asmlib import *
import stamps
from stamps import Stamps
import gen_f4 as G
from gen_f4 import *

C.nb1 = 1
C.pre = 2
C.hsl = 8
G.BARS1[:] = [3, 7, 11, 15, 17, 19, 27]
sM = [32, 33, 34, 35]
sOL = [24, 25, 26, 27]

def gen_ln(a, st):
    srd(a, S_W, P_X, HF_BYTES)
    a(f"""
    s_bfe_u32 s{sT}, s2, 0x50002
    s_lshl_b32 s{sT}, s{sT}, 6
    s_and_b32 s{sT2}, s2, 3
    s_lshl_b32 s{sT2}, s{sT2}, 4
    s_add_u32 s{sT}, s{sT}, s{sT2}
    s_lshl_b32 s{sT2}, s{sWAVE}, 2
    s_add_u32 s{sT}, s{sT}, s{sT2}
    s_lshr_b32 s{sT2}, s2, 7
    s_sub_u32 s{sT}, s{sT}, s{sT2}
    s_add_u32 s{sT}, s{sT}, 1
    s_lshl_b32 s{sOW}, s{sT}, 10
    v_lshlrev_b32 v3, 4, v1
    buffer_load_dwordx4 v[8:11], v3, {R4(S_W)}, s{sOW} offen
    buffer_load_dwordx4 v[12:15], v3, {R4(S_W)}, s{sOW} offen offset:2048
    """)
    srd(a, S_OUT, P_WS, HF_BYTES)
    srd(a, S_DBG, P_DBG, 256)
    srd(a, S_FLAG, P_WS, F_BYTES, F_OFF)
    a(f"""
    s_add_u32 s{sT}, s{sKA}, 1
    s_and_b32 s{sT}, s{sT}, 3
    s_add_u32 s{sT}, s{sT}, 16
    s_lshl_b32 s{sT}, s{sT}, 12
    v_and_b32 v46, 7, v1
    v_and_b32 v44, 31, v1
    v_lshlrev_b32 v44, 7, v44
    v_lshl_add_u32 v44, v46, 4, v44
    v_lshrrev_b32 v47, 5, v1
    v_mul_u32_u24 v47, {PAIR}, v47
    s_lshl_b32 s{sT2}, s{sWAVE}, 2
    s_add_u32 s{sT2}, s{sT2}, s{sT}
    v_add3_u32 v44, v44, v47, s{sT2}
    v_lshrrev_b32 v47, 3, v1
    v_xor_b32 v46, v46, v47
    v_lshlrev_b32 v45, 7, v47
    v_lshl_add_u32 v45, v46, 4, v45
    s_add_u32 s{sT}, s{sT}, s{sLDS}
    v_add_u32 v45, s{sT}, v45
    s_lshl_b32 s{sOA}, s2, 13
    s_lshl_b32 s{sT}, s{sWAVE}, 11
    s_add_u32 s{sOA}, s{sOA}, s{sT}
    v_mov_b32 v48, {hex(f2u(1e-5))}
    v_mov_b32 v49, {hex(f2u(1.0/512))}
    s_add_u32 s{sT}, s{sKA}, 2
    s_and_b32 s{sT}, s{sT}, 3
    s_add_u32 s{sT}, s{sT}, 16
    s_lshl_b32 s{sT}, s{sT}, 12
    v_mov_b32 v50, s{sT}
    v_mov_b32 v51, 1
    s_lshr_b32 s{sT}, s2, 2
    s_lshl_b32 s{sT}, s{sT}, 7
    s_and_b32 s{sT2}, s2, 3
    s_lshl_b32 s{sT2}, s{sT2}, 2
    s_add_u32 s{sT}, s{sT}, s{sT2}
    v_mov_b32 v23, s{sT}
    v_mov_b32 v7, 0
    """)
    E = 24
    def e(j,i): return E+8*j+i
    S = 40
    for j in range(2):
        a(f"s_waitcnt vmcnt({1-j})")
        for i in range(4):
            a(f"v_lshlrev_b32 {vr(e(j,2*i))}, 16, {vr(8+4*j+i)}")
            a(f"v_and_b32 {vr(e(j,2*i+1))}, 0xffff0000, {vr(8+4*j+i)}")
        a(f"v_pk_add_f32 {vr(S+2*j,2)}, {vr(e(j,0),2)}, {vr(e(j,2),2)}")
        a(f"v_pk_add_f32 v[52:53], {vr(e(j,4),2)}, {vr(e(j,6),2)}")
        a(f"v_pk_add_f32 {vr(S+2*j,2)}, {vr(S+2*j,2)}, v[52:53]")
        a(f"v_add_f32 {vr(S+2*j)}, {vr(S+2*j)}, {vr(S+2*j+1)}")
    st.stamp()
    a(f"buffer_load_dword v2, v7, {R4(S_DBG)}, 0 offen sc1")
    def reduce2():
        a("s_nop 0")
        a(f"v_permlane32_swap_b32 {vr(S)}, {vr(S+2)}")
        a("s_nop 1")
        a(f"v_add_f32 {vr(S)}, {vr(S)}, {vr(S+2)}")
        a(f"v_add_f32 {vr(S+2)}, {vr(S)}, {vr(S+2)}" if False else f"v_mov_b32 {vr(S+2)}, {vr(S)}")
        a("s_nop 1")
        a(f"v_permlane16_swap_b32 {vr(S)}, {vr(S+2)}")
        a("s_nop 1")
        a(f"v_add_f32 {vr(S)}, {vr(S)}, {vr(S+2)}")
        for sh in (8,4,2,1):
            a("s_nop 1")
            a(f"v_add_f32_dpp {vr(S)}, {vr(S)}, {vr(S)} row_ror:{sh} row_mask:0xf bank_mask:0xf")
    SC = [24, 26]
    def readl():
        a("s_nop 1")
        a(f"v_readlane_b32 s{SC[0]}, {vr(S)}, 0\nv_readlane_b32 s{SC[1]}, {vr(S)}, 32")
        a("s_nop 1")
    reduce2()
    a(f"v_mul_f32 {vr(S)}, {hex(f2u(-1.0/512))}, {vr(S)}")
    readl()
    for j in range(2):
        for i in range(4):
            a(f"v_pk_add_f32 {vr(e(j,2*i),2)}, {vr(e(j,2*i),2)}, s[{SC[j]}:{SC[j]+1}] op_sel_hi:[1,0]")
        a(f"v_pk_mul_f32 {vr(S+2*j,2)}, {vr(e(j,0),2)}, {vr(e(j,0),2)}")
        for i in range(1,4):
            a(f"v_pk_fma_f32 {vr(S+2*j,2)}, {vr(e(j,2*i),2)}, {vr(e(j,2*i),2)}, {vr(S+2*j,2)}")
        a(f"v_add_f32 {vr(S+2*j)}, {vr(S+2*j)}, {vr(S+2*j+1)}")
    a("s_nop 0")
    reduce2()
    a(f"v_fma_f32 {vr(S)}, {vr(S)}, v49, v48")
    a(f"v_rsq_f32 {vr(S)}, {vr(S)}")
    readl()
    for j in range(2):
        for i in range(4):
            a(f"v_pk_mul_f32 {vr(e(j,2*i),2)}, {vr(e(j,2*i),2)}, s[{SC[j]}:{SC[j]+1}] op_sel_hi:[1,0]")
    for i in range(8):
        a(f"v_cvt_pk_bf16_f32 {vr(8+i)}, {vr(e(0,i))}, {vr(e(1,i))}")
        a(f"v_xor_b32 v46, {i<<4}, v44")
        a(f"ds_write_b32 v46, {vr(8+i)}")
    a("s_waitcnt lgkmcnt(0)\ns_barrier")
    for q in range(2): a(f"ds_read_b128 {vr(24+4*q,4)}, v45 offset:{1024*q}")
    for q in range(2):
        a(f"s_waitcnt lgkmcnt({1-q})")
        a(f"buffer_store_dwordx4 {vr(24+4*q,4)}, v3, {R4(S_OUT)}, s{sOA} offen offset:{q*1024} sc1")
    a("s_barrier")
    st.stamp()
    a(f"""
    s_mov_b32 s{sCNT}, 0
    L_nonce:
    s_waitcnt vmcnt(0)
    v_cmp_eq_u32 vcc, 0, v2
    s_cbranch_vccz L_nonced
    buffer_load_dword v2, v7, {R4(S_DBG)}, 0 offen sc1
    s_add_u32 s{sCNT}, s{sCNT}, 1
    s_cmp_lt_u32 s{sCNT}, {C.TMO}
    s_cbranch_scc1 L_nonce
    L_nonced:
    s_mov_b64 exec, 1
    ds_add_rtn_u32 v51, v50, v51
    s_waitcnt lgkmcnt(0)
    v_cmp_eq_u32 vcc, 3, v51
    s_cbranch_vccz L_nopub1
    buffer_store_dword v2, v23, {R4(S_FLAG)}, 0 offen sc1
    L_nopub1:
    s_mov_b64 exec, -1
    """)
    st.stamp()

def cnt_zero(a):
    a(f"""
    s_add_u32 s{sT}, s{sKA}, 2
    s_and_b32 s{sT}, s{sT}, 3
    s_add_u32 s{sT}, s{sT}, 16
    s_lshl_b32 s{sT}, s{sT}, 12
    v_mov_b32 v12, s{sT}
    v_mov_b32 v7, 0
    ds_write_b32 v12, v7
    """)

def h_touch(a):
    srd(a, S_ACT, P_WS, HF_BYTES)
    a(f"""
    v_and_b32 v3, 31, v1
    v_lshlrev_b32 v3, 7, v3
    v_lshrrev_b32 v4, 5, v1
    v_lshl_add_u32 v3, v4, 13, v3
    s_mul_i32 s{sT}, s{sWAVE}, 10
    s_add_u32 s{sT}, s{sT}, s{sJ}
    s_lshl_b32 s{sT}, s{sT}, 14
    s_and_b32 s{sT2}, s{sX}, 1
    s_lshl_b32 s{sT2}, s{sT2}, 12
    s_add_u32 s{sOA}, s{sT}, s{sT2}
    s_barrier
    """)
    if C.hpf:
        a(f"""
        buffer_load_dword v24, v3, {R4(S_ACT)}, s{sOA} offen sc1
        s_add_u32 s{sOA}, s{sOA}, {80*16384}
        buffer_load_dword v25, v3, {R4(S_ACT)}, s{sOA} offen sc1
        """)
    a("s_barrier")

def main(out, opts):
    for o in opts:
        k, v = o.split('=')
        if k == 'stamp': stamps.STAMP = bool(int(v)); continue
        if k == 'cyc': stamps.CYC = bool(int(v)); continue
        cur = getattr(C, k)
        setattr(C, k, int(v) if isinstance(cur, int) else v.replace('_', ' '))
    if C.fine == 1: stamps.ONLY = {4, 5}
    if C.fine == 2: stamps.ONLY = {9, 10, 11}
    a = Asm()
    a.raw(HEADER.rstrip('\n'))
    a.raw(f"; @launch grid=(256,1,1) block=(512,1,1) lds={2*PAIR}")
    a.raw('.amdgcn_target "amdgcn-amd-amdhsa--gfx950"')
    a.raw(".text")
    kernel_begin(a, NAME)
    a("s_cmp_ge_u32 s2, 256\ns_cbranch_scc1 L_done")
    st = Stamps(a, 0)
    st.stamp()
    class LS:
        def stamp(self, i):
            if stamps.STAMP and C.swave == 4:
                a(f"s_memrealtime s[{64+2*i}:{65+2*i}]\ns_waitcnt lgkmcnt(0)")
    ls = LS()
    a(f"""
    s_load_dwordx16 s[4:19], s[0:1], 0
    s_memrealtime s[62:63]
    s_and_b32 s{sX}, s2, 7
    s_lshr_b32 s{sJ}, s2, 3
    v_and_b32 v1, 63, v0
    v_lshrrev_b32 v2, 6, v0
    s_lshr_b32 s{sT}, s{sX}, 1
    v_readfirstlane_b32 s{sWAVE}, v2
    s_mul_i32 s{sT}, s{sT}, 22
    s_add_u32 s{sT}, s{sT}, s{sJ}
    s_sub_u32 s{sT}, s{sT}, 10
    s_lshr_b32 s{sFT}, s{sT}, 2
    s_and_b32 s{sKA}, s{sT}, 3
    s_and_b32 s{sW4}, s{sWAVE}, 3
    s_lshr_b32 s{sKH}, s{sW4}, 1
    s_and_b32 s{sDH}, s{sWAVE}, 1
    s_mul_i32 s{sLDS}, s{sKH}, {PAIR}
    s_lshl_b32 s{sT}, s{sDH}, 11
    s_add_u32 s{sLDS}, s{sLDS}, s{sT}
    s_cmp_ge_u32 s{sWAVE}, 4
    s_cbranch_scc1 L_lw
    s_waitcnt lgkmcnt(0)
    """)
    gen_ln(a, st)
    a(f"s_cmp_lt_u32 s{sJ}, 10\ns_cbranch_scc1 L_hc")
    a(f"""
    s_and_b32 s{sT}, s{sX}, 1
    s_lshl_b32 s{sT}, s{sT}, 2
    s_add_u32 s{sD0}, s{sKA}, s{sT}
    s_lshl_b32 s{sD0}, s{sD0}, 6
    s_lshl_b32 s{sCOL}, s{sFT}, 6
    """)
    act_setup(a)
    srd(a, S_W, P_B1, 2752)
    a(f"""
    s_lshl_b32 s{sT}, s{sKH}, 5
    s_add_u32 s{sT}, s{sT}, s{sCOL}
    s_lshl_b32 s{sT}, s{sT}, 1
    v_lshlrev_b32 v16, 3, v5
    v_add_u32 v16, s{sT}, v16
    """)
    for j in range(4):
        a(f"buffer_load_dwordx2 {vr(BIAS+2*j,2)}, v16, {R4(S_W)}, 0 offen offset:{16*j}")
    b2_load(a)
    tr_setup(a, False)
    srd(a, S_ACT, P_WS, HF_BYTES)
    srd(a, S_OUT, P_WS, UF_BYTES, UF_OFF)
    for i in range(48): a(f"v_mov_b32 v{RA+i}, 0")
    xch_setup(a, True)
    a("s_waitcnt vmcnt(0)")
    for j in range(4):
        for r in range(4):
            b = BIAS+2*j+(r>>1)
            if r&1: a(f"v_and_b32 v{BF+4*j+r}, 0xffff0000, v{b}")
            else: a(f"v_lshlrev_b32 v{BF+4*j+r}, 16, v{b}")
    gemm_loop(a, True, st)
    st.stamp()
    a(f"""
    s_mov_b64 exec, 1
    s_waitcnt vmcnt(0)
    ds_add_rtn_u32 v11, v10, v11
    s_waitcnt lgkmcnt(0)
    v_cmp_eq_u32 vcc, 3, v11
    s_cbranch_vccz L_nopub
    buffer_store_dword v2, v23, {R4(S_FLAG)}, 0 offen sc1
    L_nopub:
    s_mov_b64 exec, -1
    s_branch L_g2d
    """)
    n_save = st.n
    a.label("L_hc")
    a(f"v_lshlrev_b32 v23, 7, v1\ns_cmp_lg_u32 s{sWAVE}, 0\ns_cbranch_scc1 L_polled_h")
    if C.hsl: a(f"s_sleep {C.hsl}")
    poll4(a, "h", 23)
    st.n = 4
    st.stamp()
    h_touch(a)
    a("s_branch L_g2c")
    a.label("L_lw")
    cnt_zero(a)
    a(f"s_cmp_lt_u32 s{sJ}, 10\ns_cbranch_scc1 L_agent")
    dma_voff(a, PR, None)
    a(f"""
    s_lshl_b32 s{sLE}, s{sFT}, 7
    s_add_u32 s{sLO}, s{sLE}, {22*128}
    s_cmp_eq_u32 s{sFT}, 21
    s_cselect_b32 s{sLO}, s{sLE}, s{sLO}
    s_sub_u32 s{sKW}, s{sLE}, s{sLO}
    """)
    for b in range(4):
        a(f"""
        s_add_u32 s{sT}, s{sKA}, {b}
        s_and_b32 s{sT}, s{sT}, 3
        s_mul_i32 s{sT2}, s{sT}, {64*PR}
        s_add_u32 s{sOL[b]}, s{sT2}, s{sLO}
        s_lshl_b32 s{sT}, s{sT}, 12
        s_add_u32 s{sM[b]}, s{sT}, s{sLDS}
        """)
    a("s_waitcnt lgkmcnt(0)")
    srd(a, S_W, P_W1, W_BYTES)
    lv = VM()
    def ab_dma(g, b, slow=False):
        a(f"s_add_u32 m0, s{sM[b]}, {g*16384}")
        if g < 4: a(f"s_add_u32 s{sOW}, s{sOL[b]}, {g*4*64*PR}")
        else: a(f"s_add_u32 s{sOW}, s{sOL[b]}, s{sKW}")
        a(f"buffer_load_dwordx4 v8, {R4(S_W)}, s{sOW} offen lds")
        if slow: a("s_waitcnt vmcnt(0)")
        a(f"buffer_load_dwordx4 v9, {R4(S_W)}, s{sOW} offen offset:1024 lds")
        lv.issue(('g', g)); lv.issue(('g', g))
    for g in range(C.nb1): ab_dma(g, 0, slow=(g == 0 and C.slow))
    srd(a, S_DBG, P_DBG, 256)
    srd(a, S_FLAG, P_WS, F_BYTES, F_OFF)
    srd(a, S_X, P_WS, XB_BYTES, XB_OFF)
    a(f"""
    s_and_b32 s{sT}, s{sX}, 1
    s_lshl_b32 s{sT}, s{sT}, 2
    s_add_u32 s{sD0}, s{sKA}, s{sT}
    s_lshl_b32 s{sT}, s{sFT}, 3
    s_add_u32 s{sT}, s{sT}, s{sD0}
    s_sub_u32 s{sT2}, s{sT}, 8
    s_add_u32 s{sOA}, s{sD0}, 168
    s_cmp_eq_u32 s{sFT}, 0
    s_cselect_b32 s{sT2}, s{sOA}, s{sT2}
    s_cmp_eq_u32 s{sKH}, 0
    s_cselect_b32 s{sT}, s{sT2}, s{sT}
    s_lshl_b32 s{sT}, s{sT}, 13
    s_lshl_b32 s{sT2}, s{sDH}, 12
    s_add_u32 s{sT}, s{sT}, s{sT2}
    v_lshlrev_b32 v16, 4, v1
    v_add_u32 v14, s{sT}, v16
    s_add_u32 s{sT2}, s{sT2}, {12*4096}
    v_add_u32 v17, s{sT2}, v16
    v_add_u32 v18, {PAIR}, v17
    v_mov_b32 v10, 0xff
    v_mov_b32 v12, {CNT_ADDR}
    v_mov_b32 v7, 0
    v_lshlrev_b32 v23, 7, v1
    s_barrier
    s_barrier
    """)
    for g in range(C.nb1, 5): ab_dma(g, 0)
    for g in range(C.pre):
        for b in (1, 2, 3): ab_dma(g, b)
    ls.stamp(1)
    a(f"s_cmp_lg_u32 s{sWAVE}, 4\ns_cbranch_scc1 L_polled_g1")
    poll4(a, "g1", 23)
    ls.stamp(2)
    a("s_waitcnt vmcnt(0)\ns_barrier")
    lv.q = []
    ls.stamp(3)
    a(f"buffer_load_dword v2, v7, {R4(S_DBG)}, 0 offen sc1"); lv.issue('n')
    items = [('R', g) for g in range(C.pre, 5)]
    sched = {0: [], 3: [], 7: [], 11: [], 15: [], 17: [], 19: [], 27: []}
    if C.pre == 2:
        sched = {0: [('R',2)], 3: [('R',3), 20], 7: [('R',4), 21], 11: [22,23,24], 15: [25,26,27], 17: [], 19: [28,29,30,31], 27: []}
    elif C.pre == 3:
        sched = {0: [('R',3)], 3: [('R',4)], 7: [20,21,22], 11: [23,24,25], 15: [26,27,28], 17: [], 19: [29,30,31], 27: []}
    elif C.pre == 5:
        sched = {0: [], 3: [20,21,22], 7: [23,24,25], 11: [26,27], 15: [28,29], 17: [], 19: [30,31], 27: []}
    def need_at(bm):
        nxt = [x for x in G.BARS1 if x > bm]
        last = (nxt[0] if nxt else 32)
        return {('g', s//4) for s in range(0, min(last+1, 20))} | {('s', s) for s in range(20, min(last+1, 32))}
    def run(bm):
        for it in sched[bm]:
            if isinstance(it, tuple):
                for b in (1, 2, 3): ab_dma(it[1], b)
            else:
                assert it - 20 < bm
                w_dma(a, True, it); lv.issue(('s', it)); lv.issue(('s', it))
    run(0)
    for bm in G.BARS1:
        need = need_at(bm)
        if bm == 17: need.add('n')
        lv.wait_for(a, need)
        if bm == 17:
            a(f"""
            v_readfirstlane_b32 s{sPAT[0]}, v2
            s_nop 3
            s_mul_i32 s{sPAT[0]}, s{sPAT[0]}, 0x9e3779b1
            s_lshr_b32 s{sPAT[1]}, s{sPAT[0]}, 8
            s_lshr_b32 s{sPAT[2]}, s{sPAT[0]}, 16
            s_lshr_b32 s{sPAT[3]}, s{sPAT[0]}, 24
            """)
        a("s_barrier")
        run(bm)
        if bm == 17:
            a(f"ds_write_b32 v12, v7")
            lv.q = []
            a(f"s_cmp_eq_u32 s{sKH}, 0\ns_cbranch_scc1 L_lx0")
            for j in range(4): a(f"ds_read_b128 {vr(24+4*j,4)}, v17 offset:{1024*j}\nds_read_b128 {vr(40+4*j,4)}, v18 offset:{1024*j}")
            for j in range(4):
                a(f"s_waitcnt lgkmcnt({6-2*j})")
                a(f"v_pk_add_f32 {vr(24+4*j,2)}, {vr(24+4*j,2)}, {vr(40+4*j,2)}\nv_pk_add_f32 {vr(26+4*j,2)}, {vr(26+4*j,2)}, {vr(42+4*j,2)}")
                for r in range(4): a(f"v_bfi_b32 v{24+4*j+r}, v10, s{sPAT[r]}, v{24+4*j+r}")
                a(f"buffer_store_dwordx4 {vr(24+4*j,4)}, v14, {R4(S_X)}, 0 offen offset:{1024*j} sc1")
            a("s_waitcnt vmcnt(4)\ns_branch L_lx1\nL_lx0:\ns_waitcnt vmcnt(0) lgkmcnt(0)\nL_lx1:")
        if bm == 19: w2_setup(a)
    ls.stamp(4)
    a(f"s_cmp_lg_u32 s{sKH}, 0\ns_cbranch_scc1 L_lx3")
    if C.nox: a("s_branch L_lx3")
    a(f"s_mov_b32 s{sCNT}, 0\nL_lx2:")
    for j in range(4): a(f"buffer_load_dwordx4 {vr(24+4*j,4)}, v14, {R4(S_X)}, 0 offen offset:{1024*j} sc1")
    a(f"s_add_u32 s{sCNT}, s{sCNT}, 1\ns_waitcnt vmcnt(0)")
    for j in range(4): a(xcheck(j, 24, 40))
    a(f"""
    v_and_b32 v11, v10, v11
    v_cmp_ne_u32 vcc, 0, v11
    s_cbranch_vccz L_lxok
    s_cmp_lt_u32 s{sCNT}, {C.TMO}
    s_cbranch_scc1 L_lx2
    L_lxok:
    """)
    for j in range(4): a(f"ds_write_b128 v17, {vr(24+4*j,4)} offset:{8192+1024*j}")
    a("L_lx3:")
    ls.stamp(5)
    if C.e27:
        for m in range(C.e27): w_dma(a, False, m)
    a("s_waitcnt lgkmcnt(0)\ns_barrier")
    ls.stamp(6)
    a("s_branch L_g2l")
    a.label("L_agent")
    a("s_waitcnt lgkmcnt(0)")
    srd(a, S_DBG, P_DBG, 256)
    srd(a, S_FLAG, P_WS, F_BYTES, F_OFF)
    srd(a, S_W, P_W1, W_BYTES)
    a(f"""
    s_or_b32 s{sT}, s2, s{sW4}
    s_cmp_lg_u32 s{sT}, 0
    s_cbranch_scc1 L_nononce
    s_or_b32 s62, s62, 1
    v_mov_b32 v3, s62
    buffer_store_dword v3, v7, {R4(S_DBG)}, 0 offen sc1
    L_nononce:
    v_mul_u32_u24 v3, {PR}, v1
    s_waitcnt lgkmcnt(0)
    s_barrier
    s_barrier
    """)
    if C.ghost:
        a(f"""
        s_cmp_lg_u32 s{sW4}, 0
        s_cbranch_scc1 L_noghost
        s_cmp_ge_u32 s{sJ}, 5
        s_cselect_b32 s{sKA}, 1, 0
        s_cselect_b32 s{sT}, 5, 0
        s_sub_u32 s{sKW}, s{sJ}, s{sT}          ; a
        s_lshr_b32 s{sT}, s{sX}, 2
        s_mul_i32 s{sT}, s{sT}, 11
        s_add_u32 s{sT}, s{sT}, 5
        s_cmp_lt_u32 s{sKW}, 4
        s_cselect_b32 s{sT2}, 22, 0
        s_add_u32 s{sT}, s{sT}, s{sT2}
        s_lshl_b32 s{sCOL}, s{sT}, 7
        s_bfe_u32 s{sT}, s{sX}, 0x10001
        s_xor_b32 s{sT}, s{sT}, 1
        s_lshl_b32 s{sT}, s{sT}, 1
        s_add_u32 s{sT}, s{sT}, s{sKA}          ; i
        s_and_b32 s{sT2}, s{sKW}, 3
        s_lshl_b32 s{sT2}, s{sT2}, 2
        s_add_u32 s{sT2}, s{sT2}, s{sT}
        s_mul_i32 s{sOW}, s{sT2}, {64*PR}
        s_add_u32 s{sOW}, s{sOW}, s{sCOL}
        buffer_load_dword v24, v3, {R4(S_W)}, s{sOW} offen
        L_noghost:
        """)
    if C.w1rest:
        a(f"""
        s_lshr_b32 s{sT}, s{sX}, 1
        s_mul_i32 s{sT}, s{sT}, 22
        s_lshr_b32 s{sT}, s{sT}, 2
        s_lshl_b32 s{sCOL}, s{sT}, 7
        s_xor_b32 s{sT}, s{sW4}, 3
        s_mul_i32 s{sKA}, s{sT}, 10
        s_add_u32 s{sKA}, s{sKA}, s{sJ}
        L_w1r:
        s_mul_i32 s{sT}, s{sKA}, 43
        s_lshr_b32 s{sT}, s{sT}, 8
        s_mul_i32 s{sT2}, s{sT}, 6
        s_sub_u32 s{sT2}, s{sKA}, s{sT2}
        s_lshl_b32 s{sT2}, s{sT2}, 7
        s_add_u32 s{sT}, s{sT}, 4
        s_mul_i32 s{sOW}, s{sT}, {64*PR}
        s_add_u32 s{sOW}, s{sOW}, s{sT2}
        s_add_u32 s{sOW}, s{sOW}, s{sCOL}
        buffer_load_dword v24, v3, {R4(S_W)}, s{sOW} offen
        s_add_u32 s{sKA}, s{sKA}, 40
        s_cmp_lt_u32 s{sKA}, 72
        s_cbranch_scc1 L_w1r
        """)
    h_touch(a)
    w2_setup(a)
    for m in range(C.e27): w_dma(a, False, m)
    a.label("L_g2l")
    for m in range(C.e27, 16): w_dma(a, False, m)
    ls.stamp(7)
    a("s_barrier")
    ls.stamp(8)
    for m in (16, 17, 18, 19): w_dma(a, False, m)
    a(f"""
    v_min_u32 v23, 21, v1
    s_lshr_b32 s{sT}, s{sD0}, 6
    s_mul_i32 s{sT}, s{sT}, 22
    s_add_u32 s{sT}, s{sT}, {F2_L}
    v_add_u32 v23, s{sT}, v23
    v_lshlrev_b32 v23, 7, v23
    s_cmp_lg_u32 s{sWAVE}, 4
    s_cbranch_scc1 L_polled_g2
    """)
    poll(a, "g2", 23)
    ls.stamp(9)
    a("s_waitcnt vmcnt(0)\ns_barrier")
    a("s_barrier")
    for m in (20, 21): w_dma(a, False, m)
    a("s_waitcnt vmcnt(0)\ns_barrier")
    if C.swave == 4:
        st.n = 10
        a(f"s_xor_b32 s{sT}, s{sWAVE}, 4")
        st.flush(P_WS, f"s{sT}", "l")
    a("s_endpgm")
    st.n = n_save
    a.label("L_g2c")
    b2_load(a)
    a("s_waitcnt vmcnt(0)")
    a.label("L_g2d")
    st.stamp()
    g2_tile(a)
    act_setup(a)
    tr_setup(a, True)
    xch_setup(a, False)
    srd(a, S_ACT, P_WS, UF_BYTES, UF_OFF)
    srd(a, S_OUT, P_OUT, HF_BYTES)
    for q in range(16): a(f"v_lshlrev_b32 v{RA+q}, 16, v9")
    for q in range(16): a(f"v_mov_b32 v{RB+q}, 0")
    a("s_barrier")
    st.stamp()
    gemm_loop(a, False, st)
    st.stamp()
    if C.swave != 4: st.flush(P_WS, f"s{sWAVE}", "f")
    a.label("L_done")
    a("s_endpgm")
    a.raw('.section .rodata,"a"')
    a.raw(kernel_desc(NAME, HR + 8*(C.LA+1), 100))
    open(out, 'w').write(a.text())

if __name__ == "__main__":
    main(sys.argv[1], sys.argv[2:])
```

```python
import sys, math
from asmlib import *
import stamps
from stamps import Stamps
import gen_f4 as G
from gen_f4 import *
import gen_f5 as F5

C.nb1 = 3
C.pre = 2
C.hsl = 8
C.cpf = 1
C.eBX = 12
C.sleep = 2
C.sleep2 = 4
C.slow = 0
C.nag = 1
G.BARS1[:] = [3, 7, 11, 15, 17, 19, 27]
sM = [32, 33, 34, 35]
sOL = [24, 25, 26, 27]

class Edit:
    def __init__(self, a): self.a = a
    def __call__(self, s):
        if s.strip() == "s_barrier": return
        self.a(s)

def main(out, opts):
    for o in opts:
        k, v = o.split('=')
        if k == 'stamp': stamps.STAMP = bool(int(v)); continue
        if k == 'cyc': stamps.CYC = bool(int(v)); continue
        cur = getattr(C, k)
        setattr(C, k, int(v) if isinstance(cur, int) else v.replace('_', ' '))
    if C.fine == 1: stamps.ONLY = {4, 5}
    if C.fine == 2: stamps.ONLY = {9, 10}
    a = Asm()
    a.raw(HEADER.rstrip('\n'))
    a.raw(f"; @launch grid=(256,1,1) block=(512,1,1) lds={2*PAIR}")
    a.raw('.amdgcn_target "amdgcn-amd-amdhsa--gfx950"')
    a.raw(".text")
    kernel_begin(a, NAME)
    a("s_cmp_ge_u32 s2, 256\ns_cbranch_scc1 L_done")
    a("s_load_dwordx16 s[4:19], s[0:1], 0")
    st = Stamps(a, 0)
    st.stamp()
    class LS:
        def stamp(self, i):
            if stamps.STAMP and C.swave == 4:
                a(f"s_memrealtime s[{64+2*i}:{65+2*i}]\ns_waitcnt lgkmcnt(0)")
    ls = LS()
    a(f"""
    s_and_b32 s{sX}, s2, 7
    s_lshr_b32 s{sJ}, s2, 3
    v_lshrrev_b32 v2, 6, v0
    v_and_b32 v1, 63, v0
    v_readfirstlane_b32 s{sWAVE}, v2
    s_lshr_b32 s{sT}, s{sX}, 1
    s_mul_i32 s{sT}, s{sT}, 22
    s_add_u32 s{sT}, s{sT}, s{sJ}
    s_sub_u32 s{sT}, s{sT}, 10
    s_lshr_b32 s{sFT}, s{sT}, 2
    s_and_b32 s{sKA}, s{sT}, 3
    s_and_b32 s{sW4}, s{sWAVE}, 3
    s_lshr_b32 s{sKH}, s{sW4}, 1
    s_and_b32 s{sDH}, s{sWAVE}, 1
    s_mul_i32 s{sLDS}, s{sKH}, {PAIR}
    s_lshl_b32 s{sT}, s{sDH}, 11
    s_add_u32 s{sLDS}, s{sLDS}, s{sT}
    s_cmp_ge_u32 s{sWAVE}, 4
    s_cbranch_scc1 L_lw
    s_waitcnt lgkmcnt(0)
    """)
    F5.gen_ln(Edit(a), st)
    a("s_barrier")
    a(f"s_cmp_lt_u32 s{sJ}, 10\ns_cbranch_scc1 L_hc")
    a(f"""
    s_and_b32 s{sT}, s{sX}, 1
    s_lshl_b32 s{sT}, s{sT}, 2
    s_add_u32 s{sD0}, s{sKA}, s{sT}
    s_lshl_b32 s{sD0}, s{sD0}, 6
    s_lshl_b32 s{sCOL}, s{sFT}, 6
    """)
    act_setup(a)
    srd(a, S_W, P_B1, 2752)
    a(f"""
    s_lshl_b32 s{sT}, s{sKH}, 5
    s_add_u32 s{sT}, s{sT}, s{sCOL}
    s_lshl_b32 s{sT}, s{sT}, 1
    v_lshlrev_b32 v16, 3, v5
    v_add_u32 v16, s{sT}, v16
    """)
    for j in range(4):
        a(f"buffer_load_dwordx2 {vr(BIAS+2*j,2)}, v16, {R4(S_W)}, 0 offen offset:{16*j}")
    b2_load(a)
    tr_setup(a, False)
    srd(a, S_ACT, P_WS, HF_BYTES)
    srd(a, S_OUT, P_WS, UF_BYTES, UF_OFF)
    for i in range(48): a(f"v_mov_b32 v{RA+i}, 0")
    xch_setup(a, True)
    a("s_waitcnt vmcnt(0)")
    for j in range(4):
        for r in range(4):
            b = BIAS+2*j+(r>>1)
            if r&1: a(f"v_and_b32 v{BF+4*j+r}, 0xffff0000, v{b}")
            else: a(f"v_lshlrev_b32 v{BF+4*j+r}, 16, v{b}")
    gemm_loop(a, True, st)
    st.stamp()
    a(f"""
    s_mov_b64 exec, 1
    s_waitcnt vmcnt(0)
    ds_add_rtn_u32 v11, v10, v11
    s_waitcnt lgkmcnt(0)
    v_cmp_eq_u32 vcc, 3, v11
    s_cbranch_vccz L_nopub
    buffer_store_dword v2, v23, {R4(S_FLAG)}, 0 offen sc1
    L_nopub:
    s_mov_b64 exec, -1
    """)
    a.label("L_g2d")
    st.stamp()
    a("s_barrier")
    st.stamp()
    g2_tile(a)
    act_setup(a)
    tr_setup(a, True)
    xch_setup(a, False)
    srd(a, S_ACT, P_WS, UF_BYTES, UF_OFF)
    srd(a, S_OUT, P_OUT, HF_BYTES)
    for q in range(16): a(f"v_lshlrev_b32 v{RA+q}, 16, v9")
    for q in range(16): a(f"v_mov_b32 v{RB+q}, 0")
    gemm_loop(a, False, st)
    st.stamp()
    if C.swave != 4: st.flush(P_WS, f"s{sWAVE}", "f")
    a.label("L_done")
    a("s_endpgm")
    a.label("L_hc")
    b2_load(a)
    a(f"v_lshlrev_b32 v23, 7, v1\ns_cmp_lg_u32 s{sWAVE}, 0\ns_cbranch_scc1 L_polled_h")
    if C.hsl: a(f"s_sleep {C.hsl}")
    poll4(a, "h", 23)
    if stamps.ONLY is None:
        st.n = 4
        st.stamp()
    F5.h_touch(a)
    a("s_waitcnt vmcnt(0)\ns_branch L_g2d")
    a.label("L_lw")
    a(f"s_cmp_lt_u32 s{sJ}, 10\ns_cbranch_scc1 L_agent")
    dma_voff(a, PR, None)
    a(f"""
    s_lshl_b32 s{sLE}, s{sFT}, 7
    s_add_u32 s{sLO}, s{sLE}, {22*128}
    s_cmp_eq_u32 s{sFT}, 21
    s_cselect_b32 s{sLO}, s{sLE}, s{sLO}
    s_sub_u32 s{sKW}, s{sLE}, s{sLO}
    """)
    def bset(b):
        a(f"""
        s_add_u32 s{sT}, s{sKA}, {b}
        s_and_b32 s{sT}, s{sT}, 3
        s_mul_i32 s{sT2}, s{sT}, {64*PR}
        s_add_u32 s{sOL[b]}, s{sT2}, s{sLO}
        s_lshl_b32 s{sT}, s{sT}, 12
        s_add_u32 s{sM[b]}, s{sT}, s{sLDS}
        """)
    bset(0)
    a("s_waitcnt lgkmcnt(0)")
    srd(a, S_W, P_W1, W_BYTES)
    lv = VM()
    def ab_dma(g, b, slow=False):
        a(f"s_add_u32 m0, s{sM[b]}, {g*16384}")
        if g < 4: a(f"s_add_u32 s{sOW}, s{sOL[b]}, {g*4*64*PR}")
        else: a(f"s_add_u32 s{sOW}, s{sOL[b]}, s{sKW}")
        a(f"buffer_load_dwordx4 v8, {R4(S_W)}, s{sOW} offen lds")
        if slow: a("s_waitcnt vmcnt(0)")
        a(f"buffer_load_dwordx4 v9, {R4(S_W)}, s{sOW} offen offset:1024 lds")
        lv.issue(('g', g)); lv.issue(('g', g))
    for g in range(C.nb1): ab_dma(g, 0, slow=(g == 0 and C.slow))
    F5.cnt_zero(a)
    for b in (1, 2, 3): bset(b)
    srd(a, S_DBG, P_DBG, 256)
    srd(a, S_FLAG, P_WS, F_BYTES, F_OFF)
    srd(a, S_X, P_WS, XB_BYTES, XB_OFF)
    a(f"""
    s_and_b32 s{sT}, s{sX}, 1
    s_lshl_b32 s{sT}, s{sT}, 2
    s_add_u32 s{sD0}, s{sKA}, s{sT}
    s_lshl_b32 s{sT}, s{sFT}, 3
    s_add_u32 s{sT}, s{sT}, s{sD0}
    s_sub_u32 s{sT2}, s{sT}, 8
    s_add_u32 s{sOA}, s{sD0}, 168
    s_cmp_eq_u32 s{sFT}, 0
    s_cselect_b32 s{sT2}, s{sOA}, s{sT2}
    s_cmp_eq_u32 s{sKH}, 0
    s_cselect_b32 s{sT}, s{sT2}, s{sT}
    s_lshl_b32 s{sT}, s{sT}, 13
    s_lshl_b32 s{sT2}, s{sDH}, 12
    s_add_u32 s{sT}, s{sT}, s{sT2}
    v_lshlrev_b32 v16, 4, v1
    v_add_u32 v14, s{sT}, v16
    s_add_u32 s{sT2}, s{sT2}, {12*4096}
    v_add_u32 v17, s{sT2}, v16
    v_add_u32 v18, {PAIR}, v17
    v_mov_b32 v10, 0xff
    v_mov_b32 v12, {CNT_ADDR}
    v_lshlrev_b32 v23, 7, v1
    s_waitcnt lgkmcnt(0)
    s_barrier
    s_barrier
    """)
    for g in range(C.nb1, 5): ab_dma(g, 0)
    for g in range(C.pre):
        for b in (1, 2, 3): ab_dma(g, b)
    ls.stamp(1)
    a(f"s_cmp_lg_u32 s{sWAVE}, 4\ns_cbranch_scc1 L_polled_g1")
    poll4(a, "g1", 23)
    ls.stamp(2)
    a("s_waitcnt vmcnt(0)\ns_barrier")
    lv.q = []
    ls.stamp(3)
    a(f"buffer_load_dword v2, v7, {R4(S_DBG)}, 0 offen sc1"); lv.issue('n')
    if C.pre == 2:
        sched = {0: [('R',2)], 3: [('R',3), 20], 7: [('R',4), 21], 11: [22,23,24], 15: [25,26,27], 17: [], 19: [28,29,30,31], 27: []}
    elif C.pre == 3:
        sched = {0: [('R',3)], 3: [('R',4)], 7: [20,21,22], 11: [23,24,25], 15: [26,27,28], 17: [], 19: [29,30,31], 27: []}
    elif C.pre == 4:
        sched = {0: [('R',4)], 3: [20,21], 7: [22,23,24], 11: [25,26], 15: [27,28,29], 17: [], 19: [30,31], 27: []}
    elif C.pre == 5:
        sched = {0: [], 3: [20,21,22], 7: [23,24,25], 11: [26,27], 15: [28,29], 17: [], 19: [30,31], 27: []}
    def need_at(bm):
        nxt = [x for x in G.BARS1 if x > bm]
        last = (nxt[0] if nxt else 32)
        return {('g', s//4) for s in range(0, min(last+1, 20))} | {('s', s) for s in range(20, min(last+1, 32))}
    def run(bm):
        for it in sched[bm]:
            if isinstance(it, tuple):
                for b in (1, 2, 3): ab_dma(it[1], b)
            else:
                assert it - 20 < bm
                w_dma(a, True, it); lv.issue(('s', it)); lv.issue(('s', it))
    run(0)
    for bm in G.BARS1:
        need = need_at(bm)
        if bm == 17: need.add('n')
        lv.wait_for(a, need)
        if bm == 17:
            a(f"""
            v_readfirstlane_b32 s{sPAT[0]}, v2
            s_nop 3
            s_mul_i32 s{sPAT[0]}, s{sPAT[0]}, 0x9e3779b1
            s_lshr_b32 s{sPAT[1]}, s{sPAT[0]}, 8
            s_lshr_b32 s{sPAT[2]}, s{sPAT[0]}, 16
            s_lshr_b32 s{sPAT[3]}, s{sPAT[0]}, 24
            """)
        a("s_barrier")
        run(bm)
        if bm == 17:
            a(f"ds_write_b32 v12, v7")
            lv.q = []
            a(f"s_cmp_eq_u32 s{sKH}, 0\ns_cbranch_scc1 L_lx0")
            for j in range(4): a(f"ds_read_b128 {vr(24+4*j,4)}, v17 offset:{1024*j}\nds_read_b128 {vr(40+4*j,4)}, v18 offset:{1024*j}")
            for j in range(4):
                a(f"s_waitcnt lgkmcnt({6-2*j})")
                a(f"v_pk_add_f32 {vr(24+4*j,2)}, {vr(24+4*j,2)}, {vr(40+4*j,2)}\nv_pk_add_f32 {vr(26+4*j,2)}, {vr(26+4*j,2)}, {vr(42+4*j,2)}")
                for r in range(4): a(f"v_bfi_b32 v{24+4*j+r}, v10, s{sPAT[r]}, v{24+4*j+r}")
                a(f"buffer_store_dwordx4 {vr(24+4*j,4)}, v14, {R4(S_X)}, 0 offen offset:{1024*j} sc1")
            a("s_waitcnt vmcnt(4)\ns_branch L_lx1\nL_lx0:\ns_waitcnt vmcnt(0) lgkmcnt(0)\nL_lx1:")
        if bm == 19: w2_setup(a)
    ls.stamp(4)
    a(f"s_cmp_lg_u32 s{sKH}, 0\ns_cbranch_scc1 L_lx3")
    if C.nox: a("s_branch L_lx3")
    a(f"s_mov_b32 s{sCNT}, 0\nL_lx2:")
    for j in range(4): a(f"buffer_load_dwordx4 {vr(24+4*j,4)}, v14, {R4(S_X)}, 0 offen offset:{1024*j} sc1")
    a(f"s_add_u32 s{sCNT}, s{sCNT}, 1\ns_waitcnt vmcnt(0)")
    for j in range(4): a(xcheck(j, 24, 40))
    a(f"""
    v_and_b32 v11, v10, v11
    v_cmp_ne_u32 vcc, 0, v11
    s_cbranch_vccz L_lxok
    s_cmp_lt_u32 s{sCNT}, {C.TMO}
    s_cbranch_scc1 L_lx2
    L_lxok:
    """)
    for j in range(4): a(f"ds_write_b128 v17, {vr(24+4*j,4)} offset:{8192+1024*j}")
    a("s_waitcnt lgkmcnt(0)\ns_barrier")
    a("L_g2l0:")
    for m in range(C.e27): w_dma(a, False, m)
    a("s_branch L_g2l")
    a("L_lx3:")
    for m in range(C.e27): w_dma(a, False, m)
    a("s_barrier")
    a.label("L_g2l")
    ls.stamp(6)
    for m in range(C.e27, C.eBX): w_dma(a, False, m)
    ls.stamp(7)
    a("s_barrier")
    ls.stamp(8)
    for m in range(C.eBX, 20): w_dma(a, False, m)
    a(f"""
    v_min_u32 v23, 21, v1
    s_lshr_b32 s{sT}, s{sD0}, 6
    s_mul_i32 s{sT}, s{sT}, 22
    s_add_u32 s{sT}, s{sT}, {F2_L}
    v_add_u32 v23, s{sT}, v23
    v_lshlrev_b32 v23, 7, v23
    s_cmp_lg_u32 s{sWAVE}, 4
    s_cbranch_scc1 L_polled_g2
    """)
    poll(a, "g2", 23)
    ls.stamp(9)
    a("s_waitcnt vmcnt(0)\ns_barrier")
    a("s_barrier")
    for m in (20, 21): w_dma(a, False, m)
    a("s_waitcnt vmcnt(0)\ns_barrier")
    if C.swave == 4:
        st.n = 10
        a(f"s_xor_b32 s{sT}, s{sWAVE}, 4")
        st.flush(P_WS, f"s{sT}", "l")
    a("s_endpgm")
    a.label("L_agent")
    a(f"""
    s_or_b32 s{sT}, s2, s{sW4}
    s_cmp_lg_u32 s{sT}, 0
    s_cbranch_scc1 L_nononce
    s_memrealtime s[62:63]
    v_mov_b32 v7, 0
    s_waitcnt lgkmcnt(0)
    s_or_b32 s62, s62, 1
    v_mov_b32 v3, s62
    global_store_dword v7, v3, s[{P_DBG}:{P_DBG+1}] sc1
    L_nononce:
    """)
    if C.cpf:
        a(f"""
        s_cmp_lg_u32 s{sJ}, 1
        s_cbranch_scc1 L_cpf_done
        s_getpc_b64 s[{sT}:{sT+1}]
        L_pc:
        s_sub_u32 s{sT}, s{sT}, L_pc-{NAME}
        s_subb_u32 s{sT+1}, s{sT+1}, 0
        v_and_b32 v3, 255, v0
        v_lshlrev_b32 v3, 7, v3
        v_min_u32 v3, L_end-{NAME}-4, v3
        s_cmp_ge_u32 s{sW4}, (L_end-{NAME}+8191)/8192
        s_cbranch_scc1 L_cpf_done
        global_load_dword v28, v3, s[{sT}:{sT+1}]
        L_cpf_done:
        """)
    F5.cnt_zero(a)
    a("s_waitcnt lgkmcnt(0)")
    srd(a, S_DBG, P_DBG, 256)
    srd(a, S_FLAG, P_WS, F_BYTES, F_OFF)
    srd(a, S_W, P_W1, W_BYTES)
    a(f"v_mul_u32_u24 v3, {PR}, v1")
    if C.ghost:
        a(f"""
        s_cmp_lg_u32 s{sW4}, 3
        s_cbranch_scc1 L_noghost
        s_cmp_ge_u32 s{sJ}, 5
        s_cselect_b32 s{sKA}, 1, 0
        s_cselect_b32 s{sT}, 5, 0
        s_sub_u32 s{sKW}, s{sJ}, s{sT}          ; a
        s_lshr_b32 s{sT}, s{sX}, 2
        s_mul_i32 s{sT}, s{sT}, 11
        s_add_u32 s{sT}, s{sT}, 5
        s_cmp_lt_u32 s{sKW}, 4
        s_cselect_b32 s{sT2}, 22, 0
        s_add_u32 s{sT}, s{sT}, s{sT2}
        s_lshl_b32 s{sCOL}, s{sT}, 7
        s_bfe_u32 s{sT}, s{sX}, 0x10001
        s_xor_b32 s{sT}, s{sT}, 1
        s_lshl_b32 s{sT}, s{sT}, 1
        s_add_u32 s{sT}, s{sT}, s{sKA}          ; i
        s_and_b32 s{sT2}, s{sKW}, 3
        s_lshl_b32 s{sT2}, s{sT2}, 2
        s_add_u32 s{sT2}, s{sT2}, s{sT}
        s_mul_i32 s{sOW}, s{sT2}, {64*PR}
        s_add_u32 s{sOW}, s{sOW}, s{sCOL}
        buffer_load_dword v24, v3, {R4(S_W)}, s{sOW} offen
        L_noghost:
        """)
    a("s_barrier\ns_barrier")
    if C.w1rest:
        a(f"""
        s_lshr_b32 s{sT}, s{sX}, 1
        s_mul_i32 s{sT}, s{sT}, 22
        s_lshr_b32 s{sT}, s{sT}, 2
        s_lshl_b32 s{sCOL}, s{sT}, 7
        s_mul_i32 s{sKA}, s{sW4}, 10
        s_add_u32 s{sKA}, s{sKA}, s{sJ}
        L_w1r:
        s_mul_i32 s{sT}, s{sKA}, 43
        s_lshr_b32 s{sT}, s{sT}, 8
        s_mul_i32 s{sT2}, s{sT}, 6
        s_sub_u32 s{sT2}, s{sKA}, s{sT2}
        s_lshl_b32 s{sT2}, s{sT2}, 7
        s_add_u32 s{sT}, s{sT}, 4
        s_mul_i32 s{sOW}, s{sT}, {64*PR}
        s_add_u32 s{sOW}, s{sOW}, s{sT2}
        s_add_u32 s{sOW}, s{sOW}, s{sCOL}
        buffer_load_dword v24, v3, {R4(S_W)}, s{sOW} offen
        s_add_u32 s{sKA}, s{sKA}, 40
        s_cmp_lt_u32 s{sKA}, {40 if C.w1rest == 2 else 72}
        s_cbranch_scc1 L_w1r
        """)
    F5.h_touch(a)
    if C.w1rest == 2:
        a(f"""
        v_mul_u32_u24 v3, {PR}, v1
        s_cmp_ge_u32 s{sKA}, 72
        s_cbranch_scc1 L_w1r2
        s_mul_i32 s{sT}, s{sKA}, 43
        s_lshr_b32 s{sT}, s{sT}, 8
        s_mul_i32 s{sT2}, s{sT}, 6
        s_sub_u32 s{sT2}, s{sKA}, s{sT2}
        s_lshl_b32 s{sT2}, s{sT2}, 7
        s_add_u32 s{sT}, s{sT}, 4
        s_mul_i32 s{sOW}, s{sT}, {64*PR}
        s_add_u32 s{sOW}, s{sOW}, s{sT2}
        s_add_u32 s{sOW}, s{sOW}, s{sCOL}
        buffer_load_dword v24, v3, {R4(S_W)}, s{sOW} offen
        L_w1r2:
        """)
    w2_setup(a)
    a("s_branch L_g2l0")
    a.label("L_end")
    a.raw('.section .rodata,"a"')
    a.raw(kernel_desc(NAME, HR + 8*(C.LA+1), 100))
    open(out, 'w').write(a.text())

if __name__ == "__main__":
    main(sys.argv[1], sys.argv[2:])
```
